```python
import torch

def _softmax(x, axis=-1):
    return torch.softmax(x, dim=axis)
def _gelu(x):
    return torch.nn.functional.gelu(x, approximate="tanh")
def _silu(x):
    return torch.nn.functional.silu(x)
def _sigmoid(x):
    return torch.sigmoid(x)
def _layernorm(x, axis=-1, eps=1e-5):
    m = x.mean(dim=axis, keepdim=True)
    v = x.var(dim=axis, keepdim=True, unbiased=False)
    return (x - m) / torch.sqrt(v + eps)
def _scatter_add(tgt, idx, src, axis=0):
    return tgt.clone().index_add_(axis, idx, src)
def _segment_sum(src, seg, n):
    out = torch.zeros((n,) + src.shape[1:], dtype=src.dtype)
    return out.index_add_(0, seg, src)
def _pad(x, pw):
    flat = tuple(v for pair in reversed(pw) for v in pair)
    return torch.nn.functional.pad(x, flat)

kernel_name = 'interleave_layers__ssm_conv_h3__geglu_ffn__prompt'

def setup_inputs():

    _w = (lambda a: (lambda t: t.to(torch.bfloat16) if t.is_floating_point() else t)(torch.as_tensor(a)))
    def _A_setup():
        B, S, D = 1, 2048, 576
        ks = 4
        return {
            "q": _w((lambda *s: torch.randn(*s, dtype=torch.bfloat16) * 0.05)(B, S, D)),
            "k": _w((lambda *s: torch.randn(*s, dtype=torch.bfloat16) * 0.8)(B, S, D)),
            "v": _w((lambda *s: torch.randn(*s, dtype=torch.bfloat16) * 0.8)(B, S, D)),
            "shift_k": _w((lambda *s: torch.randn(*s, dtype=torch.bfloat16) * 0.8)(D, ks) * 0.5),
            "ssm_k": _w((lambda *s: torch.randn(*s, dtype=torch.bfloat16) * 0.8)(D, S) * (1.0 / S ** 0.5)),
            "ssm_D": _w((lambda *s: torch.randn(*s, dtype=torch.bfloat16) * 0.8)(D)),
        }
    _A_in = _A_setup()

    def _B_setup():
        B, S, D, F = 1, 2048, 576, 4608
        return {
            "x": _w((lambda *s: torch.randn(*s, dtype=torch.bfloat16) * 0.05)(B, S, D)),
            "w_gate": _w((lambda *s: torch.randn(*s, dtype=torch.bfloat16) * 0.05)(D, F)),
            "w_up": _w((lambda *s: torch.randn(*s, dtype=torch.bfloat16) * 0.05)(D, F)),
            "w_down": _w((lambda *s: torch.randn(*s, dtype=torch.bfloat16) * 0.05)(F, D)),
        }
    _B_in = _B_setup()

    return {
        "A_q": _A_in["q"],
        "A_k": _A_in["k"],
        "A_v": _A_in["v"],
        "A_shift_k": _A_in["shift_k"],
        "A_ssm_k": _A_in["ssm_k"],
        "A_ssm_D": _A_in["ssm_D"],
        "B_x": _B_in["x"],
        "B_w_gate": _B_in["w_gate"],
        "B_w_up": _B_in["w_up"],
        "B_w_down": _B_in["w_down"],
    }

def reference(A_q, A_k, A_v, A_shift_k, A_ssm_k, A_ssm_D, B_x, B_w_gate, B_w_up, B_w_down):
    def _A_ref(q, k, v, shift_k, ssm_k, ssm_D):
        B, S, D = q.shape
        ks = shift_k.shape[-1]
        k_pad = _pad(k, ((0, 0), (ks - 1, 0), (0, 0)))
        k_shift = torch.zeros_like(k)
        for t in range(ks):
            k_shift = k_shift + k_pad[:, t:t + S, :] * shift_k[:, ks - 1 - t][None, None, :]
        kv = k_shift * v
        L = 2 * S
        kv_pad = _pad(kv, ((0, 0), (0, S), (0, 0)))
        kf_pad = _pad(ssm_k, ((0, 0), (0, S)))
        kv_f = (lambda x, axes=(-2,-1): torch.fft.rfft2(x.float(), dim=axes))(kv_pad[:, None, :, :], axes=(1, 2))
        kf_f = (lambda x, axes=(-2,-1): torch.fft.rfft2(x.float(), dim=axes))(kf_pad[:, None, :], axes=(1, 2))
        kf_f = (lambda x, *d: x.permute(*d))(kf_f, 1, 2, 0)
        y_f = kv_f * kf_f[None, :, :, :]
        y = (lambda x, s, axes=(-2,-1): torch.fft.irfft2(x, s=s, dim=axes).to(torch.bfloat16))(y_f, (1, L), axes=(1, 2))[:, 0, :S, :]
        y = y + kv * ssm_D[None, None, :]
        return q * y

    def _B_ref(x, w_gate, w_up, w_down):
        return (_gelu(x @ w_gate) * (x @ w_up)) @ w_down

    x = A_q
    x = x + _A_ref(_layernorm(x, axis=-1), A_k, A_v, A_shift_k, A_ssm_k, A_ssm_D)
    x = x + _B_ref(_layernorm(x, axis=-1), B_w_gate, B_w_up, B_w_down)
    x = x + _A_ref(_layernorm(x, axis=-1), A_k, A_v, A_shift_k, A_ssm_k, A_ssm_D)
    x = x + _B_ref(_layernorm(x, axis=-1), B_w_gate, B_w_up, B_w_down)
    return x
```

```python
S, D, F = 2048, 576, 4608
MiB = 1 << 20
WS_W   = 0
W_SPLIT = 995328
STAGE = 36864
WS_KVT = 16 * MiB
WS_YT  = 19 * MiB
WS_XN  = [22 * MiB, 25 * MiB]
WS_X   = [28 * MiB, 31 * MiB]
WS_YR  = 34 * MiB
WS_P   = [40 * MiB, 80 * MiB]
ACT = S * D * 2
PBYTES = 16 * ACT
KA = dict(q=0, k=8, v=16, sk=24, h=32, D=40, bx=48, wg=56, wu=64, wd=72, out=80, dbg=88, ws=96)

class Asm:
    def __init__(self):
        self.L = []
    def __call__(self, s):
        for l in s.split("\n"):
            l = l.strip()
            if l: self.L.append(l if l.endswith(":") or l.startswith(".") else "    " + l)
    def text(self): return "\n".join(self.L) + "\n"

def vr(a, n=None):
    return f"v{a}" if n is None or n == 1 else f"v[{a}:{a+n-1}]"
def ar(a, n=4): return f"a[{a}:{a+n-1}]"
def sr(a, n): return f"s[{a}:{a+n-1}]"

def kernel_head(e, name):
    e(f".globl {name}\n.p2align 8\n.type {name},@function\n{name}:")

def kernel_desc(name, vgpr, agpr=0, sgpr=96):
    acc = (vgpr + 3) // 4 * 4
    nfv = vgpr if agpr == 0 else acc + agpr
    return f""".amdhsa_kernel {name}
  .amdhsa_next_free_vgpr {nfv}
  .amdhsa_next_free_sgpr {sgpr}
  .amdhsa_accum_offset {acc}
  .amdhsa_group_segment_fixed_size 0
  .amdhsa_kernarg_size 104
  .amdhsa_user_sgpr_count 2
  .amdhsa_user_sgpr_kernarg_segment_ptr 1
  .amdhsa_system_sgpr_workgroup_id_x 1
.end_amdhsa_kernel
"""

def srd(e, d, ptr, off, size):
    if off == 0:
        e(f"s_mov_b32 s{d}, s{ptr}\ns_mov_b32 s{d+1}, s{ptr+1}")
    else:
        e(f"s_add_u32 s{d}, s{ptr}, {off}\ns_addc_u32 s{d+1}, s{ptr+1}, 0")
    e(f"s_mov_b32 s{d+2}, {size}\ns_mov_b32 s{d+3}, 0x20000")

def unpack_lo(e, d, s): e(f"v_lshlrev_b32 v{d}, 16, v{s}")
def unpack_hi(e, d, s): e(f"v_and_b32 v{d}, 0xffff0000, v{s}")
```

```python
from common import *

N_CONV_WG = 144
CONV_LDS_W = 21760
UB, HB, HSTR = 0, 5120, 4160

def emit_conv_kernel(e, name="conv_kernel"):
    kernel_head(e, name)
    e(f"""
    s_cmp_ge_u32 s2, {N_CONV_WG}
    s_cbranch_scc1 L_conv_end
    s_load_dwordx4 s[4:7], s[0:1], {KA['h']}
    s_load_dwordx2 s[10:11], s[0:1], {KA['ws']}
    v_lshrrev_b32 v1, 6, v0
    v_and_b32 v2, 63, v0
    v_and_b32 v3, 15, v0
    v_readfirstlane_b32 s28, v1
    v_bfe_u32 v4, v0, 4, 2
    s_lshl_b32 s29, s2, 2
    v_lshlrev_b32 v5, 4, v2
    s_add_u32 s29, s29, s28
    s_mul_i32 s30, s28, {CONV_LDS_W}
    s_lshl_b32 s31, s29, 12
    s_waitcnt lgkmcnt(0)
    """)
    e("""
    s_add_u32 s12, s4, s31
    s_addc_u32 s13, s5, 0
    s_mov_b32 s14, 4096
    s_mov_b32 s15, 0x20000
    """)
    srd(e, 16, 10, WS_KVT, ACT); srd(e, 20, 10, WS_YT, ACT); srd(e, 24, 6, 0, D * 2)
    for r in range(4):
        e(f"buffer_load_dwordx4 v[{16+6*r}:{19+6*r}], v5, s[12:15], 0 offen offset:{1024*r}")
        e(f"buffer_load_dwordx2 v[{20+6*r}:{21+6*r}], v5, s[12:15], 0 offen offset:{1024*r+16}")
    e(f"""
    v_subrev_u32 v6, 48, v5
    v_mov_b32 v40, 0
    v_mov_b32 v41, 0
    v_mov_b32 v42, 0
    v_mov_b32 v43, 0
    buffer_load_dwordx2 v[44:45], v6, s[12:15], 0 offen
    s_lshl_b32 s32, s29, 1
    v_mov_b32 v7, s32
    buffer_load_ushort v8, v7, s[24:27], 0 offen
    """)
    for o in range(4):
        e(f"s_add_u32 m0, s30, {UB + o*1280 + 256 - o*1024}")
        e("s_nop 0")
        e(f"buffer_load_dwordx4 v5, s[16:19], s31 offen offset:{o*1024} lds")
    e(f"""
    v_mul_u32_u24 v9, 1280, v4
    v_lshl_add_u32 v9, v3, 4, v9
    v_add_u32 v9, s30, v9
    ds_write_b128 v9, v[40:43] offset:{UB}
    v_add_u32 v10, s30, v5
    """)
    T = 48
    def copies(W, addr, off):
        e(f"ds_write_b128 v{addr}, v[{W}:{W+3}] offset:{HB + off}")
        for i in range(4): e(f"v_alignbit_b32 v{T+i}, v{W+i+1}, v{W+i}, 16")
        for i in range(4): e(f"v_mov_b32 v{T+4+i}, v{W+i+1}")
        for i in range(4): e(f"v_alignbit_b32 v{T+8+i}, v{W+i+2}, v{W+i+1}, 16")
        for a in range(1, 4):
            e(f"ds_write_b128 v{addr}, v[{T+4*(a-1)}:{T+4*(a-1)+3}] offset:{HB + a*HSTR + off}")
    for r in range(4):
        e(f"s_waitcnt vmcnt({6 + 2*(3-r)})")
        copies(16 + 6*r, 10, 1024*r + 64)
        T = 60 if T == 48 else 48
    e("s_waitcnt vmcnt(5)")
    e("s_mov_b64 exec, 15")
    copies(40, 10, 0)
    e("s_mov_b64 exec, -1")
    e(f"""
    v_add_u32 v11, 1, v3
    v_and_b32 v12, 3, v11
    v_sub_u32 v11, v11, v12
    v_lshlrev_b32 v13, 3, v4
    v_sub_u32 v11, v11, v13
    v_lshlrev_b32 v11, 1, v11
    v_mul_u32_u24 v12, {HSTR}, v12
    v_add3_u32 v11, v11, v12, s30
    v_add_u32 v11, {HB + 48}, v11
    v_add_u32 v12, 240, v9
    s_waitcnt vmcnt(0) lgkmcnt(0)
    v_lshlrev_b32 v8, 16, v8
    """)
    FB = [16, 64]
    ACC = 112
    def acc(t, mt): return ACC + 4 * (2 * t + mt)
    def reads(buf, jo):
        L = []
        for b in range(4):
            r = FB[buf] + 32 + 4 * b
            L.append(f"ds_read_b128 v[{r}:{r+3}], v12 offset:{UB + 16 - 16*jo + 256*b}")
        for a in range(4):
            for mt in range(2):
                r = FB[buf] + 4 * (2 * a + mt)
                o = 64 * jo + 1024 * a + 32 * mt
                L.append(f"ds_read_b64 v[{r}:{r+1}], v11 offset:{o}")
                L.append(f"ds_read_b64 v[{r+2}:{r+3}], v11 offset:{o+8}")
        return L
    def step(buf, rd, extra=()):
        mf = [(t, a, mt) for a in range(4) for mt in range(2) for t in range(a, 4)]
        rd = list(rd); extra = list(extra)
        for i, (t, a, mt) in enumerate(mf):
            A = FB[buf] + 4 * (2 * a + mt); B = FB[buf] + 32 + 4 * (t - a); C = acc(t, mt)
            if i == 0: e("s_waitcnt lgkmcnt(0)")
            e(f"v_mfma_f32_16x16x32_bf16 v[{C}:{C+3}], v[{A}:{A+3}], v[{B}:{B+3}], v[{C}:{C+3}]")
            for _ in range(2):
                if rd: e(rd.pop(0))
            if not rd and extra: e(extra.pop(0))
        for x in extra: e(x)
    for i in range(32): e(f"v_mov_b32 v{ACC+i}, 0")
    for r in reads(0, 0): e(r)
    e("s_mov_b32 s33, 0")
    e("L_conv_loop:")
    step(0, reads(1, 1), [f"v_add_u32 v11, 128, v11", "v_subrev_u32 v12, 32, v12"])
    step(1, reads(0, 0), ["s_add_u32 s33, s33, 1", "s_cmp_lt_u32 s33, 8"])
    e("s_cbranch_scc1 L_conv_loop")
    e(f"""
    s_waitcnt lgkmcnt(0)
    v_lshrrev_b32 v13, 1, v4
    v_mul_u32_u24 v13, 1280, v13
    v_lshl_add_u32 v13, v3, 4, v13
    v_and_b32 v14, 1, v4
    v_xor_b32 v14, 1, v14
    v_lshl_add_u32 v13, v14, 3, v13
    v_add_u32 v13, s30, v13
    """)
    U = 16
    for t in range(4):
        for mt in range(2):
            r = U + 2 * (2 * t + mt)
            e(f"ds_read_b64 v[{r}:{r+1}], v13 offset:{UB + 256 + mt*2560 + t*256}")
    e(f"""
    v_and_b32 v14, 1, v4
    v_lshrrev_b32 v15, 1, v4
    v_lshl_add_u32 v14, v14, 1, v15
    v_lshl_add_u32 v14, v3, 2, v14
    v_mul_u32_u24 v14, 9216, v14
    s_lshl_b32 s34, s29, 4
    s_waitcnt lgkmcnt(0)
    """)
    T = 40
    for t in range(4):
        O = 64 + 4 * t
        for mt in range(2):
            r = U + 2 * (2 * t + mt); C = acc(t, mt)
            unpack_hi(e, T, r + 1); unpack_lo(e, T + 1, r + 1); unpack_hi(e, T + 2, r); unpack_lo(e, T + 3, r)
            for i in range(4): e(f"v_mul_f32 v{T+i}, v{T+i}, v8")
            e(f"v_cvt_pk_bf16_f32 v{T+4}, v{T}, v{T+1}")
            e(f"v_cvt_pk_bf16_f32 v{T+5}, v{T+2}, v{T+3}")
            e(f"v_cvt_pk_bf16_f32 v{T+6}, v{C}, v{C+1}")
            e(f"v_cvt_pk_bf16_f32 v{T+7}, v{C+2}, v{C+3}")
            unpack_lo(e, T, T + 4); unpack_hi(e, T + 1, T + 4); unpack_lo(e, T + 2, T + 5); unpack_hi(e, T + 3, T + 5)
            unpack_lo(e, T + 8, T + 6); unpack_hi(e, T + 9, T + 6); unpack_lo(e, T + 10, T + 7); unpack_hi(e, T + 11, T + 7)
            for i in range(4): e(f"v_add_f32 v{T+i}, v{T+i}, v{T+8+i}")
            e(f"v_cvt_pk_bf16_f32 v{O+2*mt}, v{T}, v{T+1}")
            e(f"v_cvt_pk_bf16_f32 v{O+2*mt+1}, v{T+2}, v{T+3}")
        e("s_nop 1")
        e(f"v_permlane16_swap_b32 v{O}, v{O+2}")
        e(f"v_permlane16_swap_b32 v{O+1}, v{O+3}")
        e(f"buffer_store_dwordx4 v[{O}:{O+3}], v14, s[20:23], s34 offen")
        if t < 3: e(f"s_add_u32 s34, s34, {64*9216}")
    e("L_conv_end:\ns_endpgm")
    return dict(name=name, grid=N_CONV_WG, block=256, lds=4 * CONV_LDS_W, desc=kernel_desc(name, 144))
```

```python
from common import *

V_LA, V_LAN = 1, 2
V_GA = [3, 4, 5]
V_ST = 6
V_C2 = 7
V_T = 8
V_OUT = 16
ACC = 24
FB = 56
HB0 = 130
NV = 204
S_W, S_XN, S_P = 12, 16, 20
S_WV = 28
S_C1 = 29
S_DMA = 30
S_SLOT = 31
S_RD = 32
S_ST0, S_ST1 = 33, 34
S_IDX = 35
S_CNT = 36
S_LANE16 = None
V_L16 = 202
C1 = 0xc0135761
C2 = 0xbdd2d3c8
import struct
def f2u(x): return struct.unpack('<I', struct.pack('<f', x))[0]
LOG2E = 1.4426950408889634
K = 2 * 0.7978845608028654
C1 = f2u(-LOG2E * K); C2 = f2u(-LOG2E * K * 0.044715)

def acc1(par, mat, mt): return ACC + 16 * par + 4 * (2 * mat + mt)
def acc2(tl, mt): return ACC + 4 * (2 * tl + mt)
def mfma(D_, A, B, first): return f"v_mfma_f32_16x16x32_bf16 v[{D_}:{D_+3}], v[{A}:{A+3}], {B}, " + ("0" if first else f"v[{D_}:{D_+3}]")

def gelu_ops(par, hreg):
    ops = []
    els = [(mt, i) for mt in range(2) for i in range(4)]
    def G(mt, i): return acc1(par, 0, mt) + i
    def U(mt, i): return acc1(par, 1, mt) + i
    for mt in range(2):
        E = [(mt, i) for i in range(4)]
        for (m, i) in E: ops.append(f"v_mul_f32 v{V_T+4*m+i}, v{G(m,i)}, v{G(m,i)}")
        for (m, i) in E: ops.append(f"v_fma_f32 v{V_T+4*m+i}, v{V_T+4*m+i}, v{V_C2}, s{S_C1}")
        for (m, i) in E: ops.append(f"v_mul_f32 v{V_T+4*m+i}, v{V_T+4*m+i}, v{G(m,i)}")
        for (m, i) in E: ops.append(f"v_exp_f32 v{V_T+4*m+i}, v{V_T+4*m+i}")
        for (m, i) in E: ops.append(f"v_mul_f32 v{U(m,i)}, v{G(m,i)}, v{U(m,i)}")
        for (m, i) in E: ops.append(f"v_add_f32 v{V_T+4*m+i}, 1.0, v{V_T+4*m+i}")
        for (m, i) in E: ops.append(f"v_rcp_f32 v{V_T+4*m+i}, v{V_T+4*m+i}")
        for (m, i) in E: ops.append(f"v_mul_f32 v{U(m,i)}, v{U(m,i)}, v{V_T+4*m+i}")
    cv = []
    for mt in range(2):
        for h in range(2):
            cv.append(f"v_cvt_pk_bf16_f32 v{hreg(mt)+h}, v{U(mt,2*h)}, v{U(mt,2*h+1)}")
    return ops, cv

def dma_ops():
    L = []
    for i in range(9):
        if i % 4 == 0: L.append(f"s_add_u32 m0, s{S_SLOT}, {(i//4)*4096}")
        L.append(f"buffer_load_dwordx4 v{V_GA[i//4]}, s[{S_W}:{S_W+3}], s{S_DMA} offen offset:{(i%4)*1024} lds")
    return L

def slot_update():
    return [f"s_add_u32 s{S_DMA}, s{S_DMA}, {STAGE}",
            f"s_add_u32 s{S_SLOT}, s{S_SLOT}, {STAGE}",
            f"s_cmp_ge_u32 s{S_SLOT}, {4*STAGE}",
            f"s_cselect_b32 s37, {4*STAGE}, 0",
            f"s_sub_u32 s{S_SLOT}, s{S_SLOT}, s37"]
def rd_update():
    return [f"s_add_u32 s{S_RD}, s{S_RD}, {STAGE}",
            f"s_cmp_eq_u32 s{S_RD}, {4*STAGE}",
            f"s_cselect_b32 s{S_RD}, 0, s{S_RD}"]

def emit_sched(e, mf, pre, fill):
    for i, m in enumerate(mf):
        for x in pre.get(i, []): e(x)
        e(m)
        for x in fill.get(i, []): e(x)

def add(d, i, x): d.setdefault(i, []).append(x)

def p1_stage(e, par, hreg, idx, la, lan, vmn, do_gelu=True, tail=()):
    mf = []; pre = {}; fill = {}
    for i in range(72):
        g, r = divmod(i, 12); mt, k = divmod(r, 6)
        mat = g & 1; kap = 6 * (g >> 1) + k
        A = FB + 36 * (g & 1) + 4 * k
        mf.append(mfma(acc1(par, mat, mt), A, ar((mt * 18 + kap) * 4), kap == 0))
        if r == 0:
            if g == 5:
                add(pre, i, f"s_waitcnt vmcnt({vmn}) lgkmcnt(0)"); add(pre, i, "s_barrier")
            else: add(pre, i, "s_waitcnt lgkmcnt(0)")
        if r < 6:
            d = FB + 36 * ((g + 1) & 1) + 4 * r
            if g < 5: add(fill, i, f"ds_read_b128 v[{d}:{d+3}], v{la} offset:{((g+1)*6+r)*1024}")
            else: add(fill, i, f"ds_read_b128 v[{d}:{d+3}], v{lan} offset:{r*1024}")
    other = dma_ops() + slot_update() + rd_update()
    free = [12 * g + r for g in range(5) for r in range(6, 11)]
    assert len(other) <= len(free)
    for s, x in zip(free, other): add(fill, s, x)
    ops, cv = gelu_ops(1 - par, hreg)
    valu = list(ops) if do_gelu else []
    vs = 0
    for x in valu:
        add(fill, vs, x); vs += 1
    add(fill, 64, f"v_add_u32 v{la}, s{S_RD}, v{V_L16}")
    if do_gelu:
        if idx:
            add(fill, 66, f"s_set_gpr_idx_on s{S_IDX}, gpr_idx(DST)")
            for x in cv: add(fill, 66, x)
            add(fill, 66, "s_set_gpr_idx_off")
            add(fill, 67, f"s_add_u32 s{S_IDX}, s{S_IDX}, 2")
        else:
            for n, x in enumerate(cv): add(fill, 66 + n, x)
    for n, x in enumerate(tail): add(fill, 70 + n, x)
    emit_sched(e, mf, pre, fill)

def p2_stage(e, la, lan, vmn, off01, off23, first=False, tail=()):
    mf = []; pre = {}; fill = {}
    for i in range(72):
        tl, r = divmod(i, 18); mt, k2 = divmod(r, 9)
        A = FB + 36 * (tl & 1) + 4 * k2
        B = HB0 + 36 * mt + 4 * k2
        mf.append(mfma(acc2(tl, mt), A, f"v[{B}:{B+3}]", k2 == 0))
        if r == 0:
            if tl == 3:
                add(pre, i, f"s_waitcnt vmcnt({vmn}) lgkmcnt(0)"); add(pre, i, "s_barrier")
            else: add(pre, i, "s_waitcnt lgkmcnt(0)")
        if r < 9:
            d = FB + 36 * ((tl + 1) & 1) + 4 * r
            if tl < 3: add(fill, i, f"ds_read_b128 v[{d}:{d+3}], v{la} offset:{((tl+1)*9+r)*1024}")
            else: add(fill, i, f"ds_read_b128 v[{d}:{d+3}], v{lan} offset:{r*1024}")
    def outp(t0, off, s0):
        n = s0
        for x in out_ops(t0, off):
            add(fill, n, x)
            if not x.startswith("buffer"): n += 1
    if not first: outp(2, off23, 9)
    outp(0, off01, 45)
    n = 26
    for x in dma_ops():
        add(fill, n, x)
        if x.startswith("buffer"): n += 1
    for n, x in enumerate(slot_update() + rd_update()): add(fill, 36 + n, x)
    add(fill, 63, f"v_add_u32 v{la}, s{S_RD}, v{V_L16}")
    for n, x in enumerate(tail): add(fill, 64 + n, x)
    emit_sched(e, mf, pre, fill)

def out_ops(t0, off):
    L = []
    for mt in range(2):
        O = V_OUT + 4 * mt
        for h in range(2):
            a = acc2(t0 + h, mt)
            L.append(f"v_cvt_pk_bf16_f32 v{O+2*h}, v{a}, v{a+1}")
            L.append(f"v_cvt_pk_bf16_f32 v{O+2*h+1}, v{a+2}, v{a+3}")
        L.append(f"buffer_store_dwordx4 v[{O}:{O+3}], v{V_ST}, s[{S_P}:{S_P+3}], s{S_ST0+mt} offen offset:{off}")
    return L

def emit_ffn(e, loop=True):
    ks = []
    for lay in range(2):
        name = f"ffn{lay}_kernel"
        kernel_head(e, name)
        e(f"s_mov_b32 s38, {WS_XN[lay]}\ns_mov_b32 s39, {WS_P[lay]}")
        if lay == 0: e("s_branch L_ffn_body")
        ks.append(dict(name=name, grid=256, block=256, lds=4 * STAGE, desc=kernel_desc(name, NV, 144)))
    e(f"""
    L_ffn_body:
    s_cmp_ge_u32 s2, 256
    s_cbranch_scc1 L_ffn_end
    s_load_dwordx2 s[10:11], s[0:1], {KA['ws']}
    v_lshrrev_b32 v1, 6, v0
    v_and_b32 v2, 63, v0
    v_lshlrev_b32 v{V_L16}, 4, v2
    v_readfirstlane_b32 s{S_WV}, v1
    s_and_b32 s4, s2, 7
    s_bfe_u32 s5, s2, 0x10003
    s_lshl_b32 s4, s4, 1
    s_add_u32 s4, s4, s5
    s_lshr_b32 s5, s2, 4
    s_mul_i32 s6, s4, {W_SPLIT}
    s_mul_i32 s7, s{S_WV}, 9216
    v_add_u32 v{V_GA[0]}, s7, v{V_L16}
    v_add_u32 v{V_GA[1]}, 4096, v{V_GA[0]}
    v_add_u32 v{V_GA[2]}, 8192, v{V_GA[0]}
    s_mov_b32 s{S_DMA}, 0
    s_mov_b32 s{S_SLOT}, s7
    s_waitcnt lgkmcnt(0)
    s_add_u32 s{S_W}, s10, s6
    s_addc_u32 s{S_W+1}, s11, 0
    s_mov_b32 s{S_W+2}, {W_SPLIT}
    s_mov_b32 s{S_W+3}, 0x20000
    s_add_u32 s{S_XN}, s10, s38
    s_addc_u32 s{S_XN+1}, s11, 0
    s_mov_b32 s{S_XN+2}, {ACT}
    s_mov_b32 s{S_XN+3}, 0x20000
    """)
    def dma_stage():
        for x in dma_ops():
            e(x)
            if x.startswith("s_add"): e("s_nop 0")
        e(f"s_add_u32 s{S_DMA}, s{S_DMA}, {STAGE}\ns_add_u32 s{S_SLOT}, s{S_SLOT}, {STAGE}")
    dma_stage()
    e(f"""
    s_lshl_b32 s8, s5, 2
    s_add_u32 s8, s8, s{S_WV}
    s_mul_i32 s9, s8, {2*18432}
    """)
    for n in range(36):
        e(f"buffer_load_dwordx4 {ar(4*n)}, v{V_L16}, s[{S_XN}:{S_XN+3}], s9 offen offset:{(n%4)*1024}")
        if n % 4 == 3 and n < 35: e("s_add_u32 s9, s9, 4096")
    dma_stage(); dma_stage()
    e(f"""
    s_add_u32 s{S_P}, s10, s39
    s_addc_u32 s{S_P+1}, s11, 0
    s_mov_b32 s{S_P+2}, {PBYTES}
    s_mov_b32 s{S_P+3}, 0x20000
    s_mul_i32 s{S_ST0}, s8, {4*147456}
    s_mul_i32 s9, s4, 9216
    s_add_u32 s{S_ST0}, s{S_ST0}, s9
    s_add_u32 s{S_ST1}, s{S_ST0}, {2*147456}
    s_mov_b32 s9, 147456
    v_bfe_u32 v8, v2, 3, 1
    v_mul_lo_u32 v{V_ST}, v8, s9
    v_bfe_u32 v8, v2, 1, 2
    v_mul_u32_u24 v8, 2304, v8
    v_add_u32 v{V_ST}, v{V_ST}, v8
    v_and_b32 v8, 1, v2
    v_lshl_add_u32 v{V_ST}, v8, 4, v{V_ST}
    v_lshrrev_b32 v8, 4, v2
    v_lshl_add_u32 v{V_ST}, v8, 5, v{V_ST}
    v_mov_b32 v{V_C2}, {hex(C2)}
    s_mov_b32 s{S_C1}, {hex(C1)}
    v_mov_b32 v{V_LA}, v{V_L16}
    v_add_u32 v{V_LAN}, {STAGE}, v{V_L16}
    s_mov_b32 s{S_RD}, {STAGE}
    s_mov_b32 s{S_IDX}, 0
    s_mov_b32 s{S_CNT}, 0
    s_waitcnt vmcnt(18)
    s_barrier
    """)
    for r in range(6): e(f"ds_read_b128 v[{FB+4*r}:{FB+4*r+3}], v{V_LA} offset:{r*1024}")
    R = [V_LA, V_LAN]
    if loop:
        e(".p2align 6\nL_ffn_p1:")
        hreg = lambda mt: HB0 - 2 + 36 * mt
        p1_stage(e, 0, hreg, True, R[0], R[1], 18)
        p1_stage(e, 1, hreg, True, R[1], R[0], 18, tail=[f"s_add_u32 s{S_CNT}, s{S_CNT}, 1", f"s_cmp_lt_u32 s{S_CNT}, 9"])
        e("s_cbranch_scc1 L_ffn_p1")
    else:
        for c in range(18):
            p1_stage(e, c & 1, lambda mt: HB0 + 36 * mt + 2 * (c - 1), False, R[c & 1], R[1 - (c & 1)], 18, do_gelu=(c > 0))
    for r in range(6, 9): e(f"ds_read_b128 v[{FB+4*r}:{FB+4*r+3}], v{R[0]} offset:{r*1024}")
    ops, cv = gelu_ops(1, lambda mt: HB0 + 36 * mt + 34)
    for x in ops + cv: e(x)
    e("s_nop 1")
    if loop:
        raise_first = True
        p2_stage(e, R[0], R[1], 20, 0, 0, first=True)
        e(f"s_mov_b32 s{S_CNT}, 0")
        e(".p2align 6\nL_ffn_p2:")
        p2_stage(e, R[1], R[0], 24, 256, 128)
        p2_stage(e, R[0], R[1], 28, 512, 384, tail=[f"s_add_u32 s{S_ST0}, s{S_ST0}, 512", f"s_add_u32 s{S_ST1}, s{S_ST1}, 512",
                 f"s_add_u32 s{S_CNT}, s{S_CNT}, 1", f"s_cmp_lt_u32 s{S_CNT}, 4"])
        e("s_cbranch_scc1 L_ffn_p2")
        last = 128
    else:
        for st in range(9):
            vmn = [20, 24][st] if st < 2 else 28
            p2_stage(e, R[st & 1], R[1 - (st & 1)], vmn, 256 * st, 256 * st - 128, first=(st == 0))
        last = 256 * 8 + 128
    e("s_nop 7")
    for x in out_ops(2, last): e(x)
    e("L_ffn_end:\ns_endpgm")
    return ks
```

```python
from common import *

YPAD = 144

def rowsum(e, v, t):
    e("s_nop 1")
    e(f"v_add_f32_dpp v{v}, v{v}, v{v} quad_perm:[2,3,0,1] row_mask:0xf bank_mask:0xf")
    e("s_nop 1")
    e(f"v_add_f32_dpp v{v}, v{v}, v{v} row_ror:4 row_mask:0xf bank_mask:0xf")
    e("s_nop 1")
    e(f"v_add_f32_dpp v{v}, v{v}, v{v} row_ror:8 row_mask:0xf bank_mask:0xf")
    for op in ("v_permlane16_swap_b32", "v_permlane32_swap_b32"):
        e(f"v_mov_b32 v{t}, v{v}")
        e("s_nop 1")
        e(f"{op} v{v}, v{t}")
        e(f"v_add_f32 v{v}, v{v}, v{t}")

def round_pairs(e, src, n, pk, dst=None):
    for i in range(0, n, 2): e(f"v_cvt_pk_bf16_f32 v{pk+i//2}, v{src+i}, v{src+i+1}")
    if dst is not None:
        for i in range(0, n, 2):
            unpack_lo(e, dst + i, pk + i // 2); unpack_hi(e, dst + i + 1, pk + i // 2)

def layernorm(e, X, Dd, PK, T, unpack):
    N = 18
    e(f"v_add_f32 v{T}, v{X}, v{X+1}")
    e(f"v_add_f32 v{T+1}, v{X+2}, v{X+3}")
    for i in range(4, N, 2):
        e(f"v_add_f32 v{T}, v{T}, v{X+i}")
        e(f"v_add_f32 v{T+1}, v{T+1}, v{X+i+1}")
    e(f"v_add_f32 v{T}, v{T}, v{T+1}")
    rowsum(e, T, T + 1)
    e(f"v_mul_f32 v{T}, s40, v{T}")
    for i in range(N): e(f"v_sub_f32 v{Dd+i}, v{X+i}, v{T}")
    e(f"v_mul_f32 v{T+1}, v{Dd}, v{Dd}")
    e(f"v_mul_f32 v{T+2}, v{Dd+1}, v{Dd+1}")
    for i in range(2, N, 2):
        e(f"v_fmac_f32 v{T+1}, v{Dd+i}, v{Dd+i}")
        e(f"v_fmac_f32 v{T+2}, v{Dd+i+1}, v{Dd+i+1}")
    e(f"v_add_f32 v{T+1}, v{T+1}, v{T+2}")
    rowsum(e, T + 1, T + 2)
    e(f"v_mul_f32 v{T+1}, s40, v{T+1}")
    e(f"v_cvt_pk_bf16_f32 v{T+2}, v{T}, v{T+1}")
    unpack_lo(e, T, T + 2); unpack_hi(e, T + 1, T + 2)
    e(f"v_add_f32 v{T+1}, 0x3727c5ac, v{T+1}")
    e(f"v_cvt_pk_bf16_f32 v{T+1}, v{T+1}, v{T+1}")
    unpack_hi(e, T + 1, T + 1)
    e(f"v_sqrt_f32 v{T+1}, v{T+1}")
    for i in range(N): e(f"v_sub_f32 v{Dd+i}, v{X+i}, v{T}")
    e(f"v_cvt_pk_bf16_f32 v{T+1}, v{T+1}, v{T+1}")
    unpack_hi(e, T + 1, T + 1)
    e(f"v_rcp_f32 v{T+1}, v{T+1}")
    round_pairs(e, Dd, N, PK, Dd)
    for i in range(N): e(f"v_mul_f32 v{Dd+i}, v{Dd+i}, v{T+1}")
    round_pairs(e, Dd, N, PK, Dd if unpack else None)

def emit_ln_kernel(e, name, mode):
    red = mode in "BF"; gate = mode in "AB"
    lay = 0 if mode == "B" else 1
    kernel_head(e, name)
    e(f"""
    s_cmp_ge_u32 s2, 256
    s_cbranch_scc1 L_{name}_end
    s_load_dwordx2 s[10:11], s[0:1], {KA['ws']}
    """)
    if mode == "A": e(f"s_load_dwordx2 s[4:5], s[0:1], {KA['q']}")
    if mode == "F": e(f"s_load_dwordx2 s[4:5], s[0:1], {KA['out']}")
    e(f"""
    v_lshrrev_b32 v1, 6, v0
    v_and_b32 v2, 1, v0
    v_bfe_u32 v3, v0, 1, 5
    v_readfirstlane_b32 s28, v1
    v_and_b32 v4, 63, v0
    s_mov_b32 s40, 0x3ae38e39
    s_lshl_b32 s29, s2, 2
    s_add_u32 s29, s29, s28
    s_mul_i32 s30, s29, 2304
    v_mul_u32_u24 v5, 1152, v2
    v_lshl_add_u32 v6, v3, 2, v5
    v_lshl_add_u32 v5, v3, 4, v5
    s_waitcnt lgkmcnt(0)
    """)
    if mode == "A": srd(e, 12, 4, 0, ACT)
    else: srd(e, 12, 10, WS_X[lay], ACT)
    if mode == "F": srd(e, 16, 4, 0, ACT)
    else: srd(e, 16, 10, WS_X[0 if mode == "A" else 1], ACT)
    if gate:
        srd(e, 20, 10, WS_YT, ACT); srd(e, 24, 10, WS_XN[0 if mode == "A" else 1], ACT)
    if red: srd(e, 32, 10, WS_P[lay], PBYTES)
    XP = 8
    YL = 20
    Y = 32
    X = 50
    Dd = 68
    PK = 88
    T = 98
    PB = 104
    nvm = 0
    if gate:
        e(f"""
        s_mul_i32 s31, s2, 9216
        v_lshlrev_b32 v7, 4, v0
        s_add_u32 s36, s31, 4096
        s_add_u32 s37, s31, 8192
        buffer_load_dwordx4 v[{YL}:{YL+3}], v7, s[20:23], s31 offen
        buffer_load_dwordx4 v[{YL+4}:{YL+7}], v7, s[20:23], s36 offen
        s_cmp_lg_u32 s28, 0
        s_cbranch_scc1 L_{name}_y2
        buffer_load_dwordx4 v[{YL+8}:{YL+11}], v7, s[20:23], s37 offen
        L_{name}_y2:
        """)
    e(f"""
    buffer_load_dwordx4 v[{XP}:{XP+3}], v5, s[12:15], s30 offen
    buffer_load_dwordx4 v[{XP+4}:{XP+7}], v5, s[12:15], s30 offen offset:512
    buffer_load_dword v{XP+8}, v6, s[12:15], s30 offen offset:1024
    """)
    if red:
        e(f"""
        s_mul_i32 s38, s2, {16*9216}
        s_mul_i32 s39, s28, 2304
        s_add_u32 s38, s38, s39
        v_lshlrev_b32 v17, 4, v4
        v_lshrrev_b32 v18, 2, v3
        v_lshlrev_b32 v18, 5, v18
        v_lshl_add_u32 v18, v2, 4, v18
        v_and_b32 v19, 3, v3
        v_lshl_add_u32 v18, v19, 2, v18
        """)
        for j in range(16):
            r = PB + 8 * j
            e(f"buffer_load_dwordx4 v[{r}:{r+3}], v17, s[32:35], s38 offen")
            e(f"buffer_load_dwordx4 v[{r+4}:{r+7}], v17, s[32:35], s38 offen offset:1024")
            e(f"buffer_load_dword v{PB+128+j}, v18, s[32:35], s38 offen offset:2048")
            if j < 15: e("s_add_u32 s38, s38, 9216")
        nvm = 48
    if gate:
        e(f"""
        v_lshrrev_b32 v1, 3, v0
        v_mul_u32_u24 v1, {YPAD}, v1
        v_and_b32 v7, 7, v0
        v_lshl_add_u32 v1, v7, 4, v1
        """)
        for i in range(18): e(f"v_mov_b32 v{Y+i}, 0")
        e(f"""
        s_waitcnt vmcnt({nvm + 3})
        ds_write_b128 v1, v[{YL}:{YL+3}]
        ds_write_b128 v1, v[{YL+4}:{YL+7}] offset:{32*YPAD}
        s_cmp_lg_u32 s28, 0
        s_cbranch_scc1 L_{name}_y3
        ds_write_b128 v1, v[{YL+8}:{YL+11}] offset:{64*YPAD}
        L_{name}_y3:
        """)
        e(f"""
        s_lshl_b32 s36, s28, 2
        v_lshl_add_u32 v1, v2, 1, s36
        v_lshrrev_b32 v7, 2, v3
        v_mul_u32_u24 v7, {YPAD}, v7
        v_and_b32 v102, 3, v3
        v_lshl_add_u32 v7, v102, 5, v7
        v_add_u32 v7, v7, v1
        v_mul_u32_u24 v102, {YPAD}, v3
        v_add_u32 v1, v1, v102
        s_waitcnt lgkmcnt(0)
        s_barrier
        """)
        for h in range(2):
            for i in range(8): e(f"ds_read_u16_d16_hi v{Y+8*h+i}, v1 offset:{h*32*YPAD + i*16}")
        for i in range(2): e(f"ds_read_u16_d16_hi v{Y+16+i}, v7 offset:{64*YPAD + i*16}")
    e(f"s_waitcnt vmcnt({nvm})")
    for i in range(9):
        unpack_lo(e, X + 2 * i, XP + i); unpack_hi(e, X + 2 * i + 1, XP + i)
    if red:
        for j in range(16):
            e(f"s_waitcnt vmcnt({3*(15-j)})")
            for i in range(9):
                r = PB + 8 * j + i if i < 8 else PB + 128 + j
                if j == 0:
                    unpack_lo(e, Dd + 2 * i, r); unpack_hi(e, Dd + 2 * i + 1, r)
                else:
                    unpack_lo(e, T + 2 * (i & 1), r); unpack_hi(e, r, r)
                    e(f"v_add_f32 v{Dd+2*i}, v{Dd+2*i}, v{T+2*(i&1)}")
                    e(f"v_add_f32 v{Dd+2*i+1}, v{Dd+2*i+1}, v{r}")
        round_pairs(e, Dd, 18, PK, Dd)
        for i in range(18): e(f"v_add_f32 v{X+i}, v{X+i}, v{Dd+i}")
        round_pairs(e, X, 18, XP, X if gate else None)
    if gate:
        layernorm(e, X, Dd, PK, T, True)
        e("s_waitcnt lgkmcnt(0)")
        for i in range(18): e(f"v_mul_f32 v{Dd+i}, v{Dd+i}, v{Y+i}")
        round_pairs(e, Dd, 18, PK, Dd)
        for i in range(18): e(f"v_add_f32 v{X+i}, v{X+i}, v{Dd+i}")
        round_pairs(e, X, 18, XP, X)
    e(f"""
    buffer_store_dwordx4 v[{XP}:{XP+3}], v5, s[16:19], s30 offen
    buffer_store_dwordx4 v[{XP+4}:{XP+7}], v5, s[16:19], s30 offen offset:512
    buffer_store_dword v{XP+8}, v6, s[16:19], s30 offen offset:1024
    """)
    if gate:
        layernorm(e, X, Dd, PK, T, False)
        e(f"""
        s_lshr_b32 s36, s2, 1
        s_mul_i32 s36, s36, 18432
        s_and_b32 s37, s2, 1
        s_lshl_b32 s37, s37, 7
        s_add_u32 s36, s36, s37
        s_lshl_b32 s37, s28, 5
        s_add_u32 s36, s36, s37
        s_add_u32 s37, s36, 8192
        s_add_u32 s38, s36, 16384
        v_lshlrev_b32 v1, 4, v2
        v_lshrrev_b32 v7, 2, v3
        v_lshl_add_u32 v7, v7, 8, v1
        v_lshl_add_u32 v1, v3, 8, v1
        v_and_b32 v102, 3, v3
        v_lshl_add_u32 v7, v102, 2, v7
        buffer_store_dwordx4 v[{PK}:{PK+3}], v1, s[24:27], s36 offen
        buffer_store_dwordx4 v[{PK+4}:{PK+7}], v1, s[24:27], s37 offen
        buffer_store_dword v{PK+8}, v7, s[24:27], s38 offen
        """)
    e(f"L_{name}_end:\ns_endpgm")
    nv = PB + 144 if red else 104
    nv = min(nv, 256)
    return dict(name=name, grid=256, block=256, lds=(72 * YPAD if gate else 0), desc=kernel_desc(name, nv))
```

```python
from common import *

N_KV_WG = 288
N_W1_WG = 324
N_WD_WG = 162

def emit_kv(e):
    e(f"""
    s_load_dwordx4 s[4:7], s[0:1], {KA['k']}
    s_load_dwordx2 s[8:9], s[0:1], {KA['sk']}
    s_load_dwordx2 s[10:11], s[0:1], {KA['ws']}
    v_lshrrev_b32 v1, 6, v0
    v_and_b32 v2, 15, v0
    v_bfe_u32 v3, v0, 4, 2
    v_readfirstlane_b32 s28, v1
    s_lshr_b32 s29, s2, 5
    s_bfe_u32 s30, s2, 0x20003
    s_and_b32 s31, s2, 7
    """)
    e("""
    s_and_b32 s32, s28, 1
    s_lshr_b32 s33, s28, 1
    s_lshl_b32 s34, s29, 6
    s_lshl_b32 s32, s32, 5
    s_add_u32 s34, s34, s32
    s_lshl_b32 s35, s31, 3
    s_lshl_b32 s33, s33, 2
    s_add_u32 s35, s35, s33
    v_lshl_add_u32 v4, v2, 1, s34
    v_add_u32 v5, s35, v3
    """)
    e("""
    s_lshl_b32 s36, s30, 3
    v_lshl_add_u32 v6, v5, 5, s36
    v_mul_u32_u24 v7, 1152, v6
    v_lshl_add_u32 v7, v4, 1, v7
    s_waitcnt lgkmcnt(0)
    """)
    srd(e, 12, 4, 0, ACT); srd(e, 16, 6, 0, ACT); srd(e, 20, 8, 0, D * 8); srd(e, 24, 10, WS_KVT, ACT)
    e("""
    v_subrev_u32 v8, 3456, v7
    v_subrev_u32 v9, 2304, v7
    v_subrev_u32 v10, 1152, v7
    v_add_u32 v11, 4608, v7
    v_lshlrev_b32 v12, 3, v4
    """)
    K0 = 16
    e(f"buffer_load_dwordx4 v[36:39], v12, s[20:23], 0 offen")
    e(f"buffer_load_dword v16, v8, s[12:15], 0 offen")
    e(f"buffer_load_dword v17, v9, s[12:15], 0 offen")
    e(f"buffer_load_dword v18, v10, s[12:15], 0 offen")
    for r in range(8):
        e(f"buffer_load_dword v{19+r}, v{7 if r < 4 else 11}, s[12:15], 0 offen offset:{(r%4)*1152}")
    for r in range(8):
        e(f"buffer_load_dword v{28+r}, v{7 if r < 4 else 11}, s[16:19], 0 offen offset:{(r%4)*1152}")
    e("""
    v_lshlrev_b32 v13, 12, v4
    v_lshl_add_u32 v13, v5, 4, v13
    s_lshl_b32 s36, s30, 10
    v_add_u32 v13, s36, v13
    s_waitcnt vmcnt(8)
    """)
    for c in range(2):
        unpack_lo(e, 40 + 4*c, 36 + 2*c); unpack_hi(e, 41 + 4*c, 36 + 2*c)
        unpack_lo(e, 42 + 4*c, 37 + 2*c); unpack_hi(e, 43 + 4*c, 37 + 2*c)
    for r in range(11):
        unpack_lo(e, 48 + r, 16 + r); unpack_hi(e, 60 + r, 16 + r)
    e("s_waitcnt vmcnt(0)")
    T = 88
    for r in range(8):
        for t in range(4):
            e(f"v_mul_f32 v{T+2*t}, v{48+r+t}, v{40+3-t}")
            e(f"v_mul_f32 v{T+2*t+1}, v{60+r+t}, v{44+3-t}")
        for t in range(4):
            e(f"v_cvt_pk_bf16_f32 v{T+8+t}, v{T+2*t}, v{T+2*t+1}")
        for t in range(4):
            unpack_lo(e, T + 2*t, T + 8 + t); unpack_hi(e, T + 2*t + 1, T + 8 + t)
        unpack_lo(e, T + 12, 28 + r); unpack_hi(e, T + 13, 28 + r)
        for t in range(1, 4):
            e(f"v_add_f32 v{T}, v{T}, v{T+2*t}")
            e(f"v_add_f32 v{T+1}, v{T+1}, v{T+2*t+1}")
            e(f"v_cvt_pk_bf16_f32 v{T+8}, v{T}, v{T+1}")
            unpack_lo(e, T, T + 8); unpack_hi(e, T + 1, T + 8)
        e(f"v_mul_f32 v{72+r}, v{T}, v{T+12}")
        e(f"v_mul_f32 v{80+r}, v{T+1}, v{T+13}")
    for c in range(2):
        for p in range(4):
            e(f"v_cvt_pk_bf16_f32 v{16+4*c+p}, v{72+8*c+7-2*p}, v{72+8*c+6-2*p}")
    e("v_add_u32 v14, 4096, v13")
    e("buffer_store_dwordx4 v[16:19], v13, s[24:27], 0 offen")
    e("buffer_store_dwordx4 v[20:23], v14, s[24:27], 0 offen")
    e("s_endpgm")

def emit_transpose_store(e, store):
    for dw in range(4):
        T = 48 + 8 * (dw & 1)
        if dw == 0: e("s_waitcnt vmcnt(0)")
        for h in range(2):
            for p in range(4):
                e(f"v_perm_b32 v{T+4*h+p}, v{16+4*(2*p+1)+dw}, v{16+4*(2*p)+dw}, s{40+h}")
        for h in range(2):
            store(2 * dw + h, T + 4 * h)

def emit_w1(e):
    e(f"""
    s_load_dwordx4 s[4:7], s[0:1], {KA['wg']}
    s_load_dwordx2 s[10:11], s[0:1], {KA['ws']}
    v_lshrrev_b32 v1, 6, v0
    v_and_b32 v2, 15, v0
    v_bfe_u32 v3, v0, 4, 2
    v_readfirstlane_b32 s28, v1
    s_lshl_b32 s29, s3, 2
    s_mov_b32 s40, 0x05040100
    s_mov_b32 s41, 0x07060302
    s_add_u32 s29, s29, s28
    s_cmp_ge_u32 s29, 648
    s_cselect_b32 s30, 648, 0
    s_cselect_b32 s31, 1, 0
    s_sub_u32 s29, s29, s30
    s_mul_i32 s32, s29, 3641
    s_lshr_b32 s32, s32, 16
    s_mul_i32 s33, s32, 18
    s_sub_u32 s33, s29, s33
    s_waitcnt lgkmcnt(0)
    s_cmp_eq_u32 s31, 1
    s_cselect_b32 s4, s6, s4
    s_cselect_b32 s5, s7, s5
    """)
    srd(e, 12, 4, 0, D * F * 2); srd(e, 24, 10, WS_W, 16 * W_SPLIT)
    e("""
    s_mul_i32 s34, s33, 294912
    s_lshl_b32 s35, s32, 8
    s_add_u32 s34, s34, s35
    v_mul_u32_u24 v4, 73728, v3
    v_lshl_add_u32 v4, v2, 4, v4
    """)
    for i in range(8):
        e(f"buffer_load_dwordx4 v[{16+4*i}:{19+4*i}], v4, s[12:15], s34 offen")
        if i < 7: e("s_add_u32 s34, s34, 9216")
    e("""
    s_mul_i32 s35, s33, 43
    s_lshr_b32 s35, s35, 8
    s_mul_i32 s36, s35, 6
    s_add_u32 s36, s36, s33
    s_mul_i32 s37, s31, 6
    s_add_u32 s36, s36, s37
    s_lshl_b32 s36, s36, 10
    v_and_b32 v5, 63, v0
    v_lshlrev_b32 v5, 4, v5
    s_lshl_b32 s37, s32, 3
    """)
    def store(ec, reg):
        e(f"""
        s_mul_i32 s38, s37, 3641
        s_lshr_b32 s38, s38, 16
        s_mul_i32 s38, s38, {W_SPLIT - 18 * STAGE}
        s_mul_i32 s39, s37, {STAGE}
        s_add_u32 s38, s38, s39
        s_add_u32 s38, s38, s36
        s_add_u32 s37, s37, 1
        buffer_store_dwordx4 v[{reg}:{reg+3}], v5, s[24:27], s38 offen
        """)
    emit_transpose_store(e, store)
    e("s_endpgm")

def emit_wd(e):
    e(f"""
    s_load_dwordx2 s[4:5], s[0:1], {KA['wd']}
    s_load_dwordx2 s[10:11], s[0:1], {KA['ws']}
    v_lshrrev_b32 v1, 6, v0
    v_and_b32 v2, 7, v0
    v_bfe_u32 v3, v0, 3, 2
    v_readfirstlane_b32 s28, v1
    v_bfe_u32 v6, v0, 5, 1
    s_lshl_b32 s29, s3, 2
    s_mov_b32 s40, 0x05040100
    s_mov_b32 s41, 0x07060302
    s_add_u32 s29, s29, s28
    s_mul_i32 s32, s29, 7282
    s_lshr_b32 s32, s32, 16
    s_mul_i32 s33, s32, 9
    s_sub_u32 s33, s29, s33
    s_waitcnt lgkmcnt(0)
    """)
    srd(e, 12, 4, 0, D * F * 2); srd(e, 24, 10, WS_W, 16 * W_SPLIT)
    e("""
    s_lshr_b32 s34, s32, 1
    s_lshl_b32 s34, s34, 7
    s_and_b32 s35, s32, 1
    s_lshl_b32 s35, s35, 2
    s_add_u32 s34, s34, s35
    s_mul_i32 s34, s34, 1152
    s_lshl_b32 s35, s33, 7
    s_add_u32 s34, s34, s35
    v_lshlrev_b32 v4, 5, v3
    v_lshl_add_u32 v4, v6, 1, v4
    v_mul_u32_u24 v4, 1152, v4
    v_lshl_add_u32 v4, v2, 4, v4
    """)
    for i in range(4):
        e(f"buffer_load_dwordx4 v[{16+4*i}:{19+4*i}], v4, s[12:15], s34 offen")
        e(f"buffer_load_dwordx4 v[{32+4*i}:{35+4*i}], v4, s[12:15], s34 offen offset:1152")
        if i < 3: e("s_add_u32 s34, s34, 9216")
    for kk in range(2):
        e(f"""
        s_lshl_b32 s35, s32, 1
        s_add_u32 s35, s35, {kk}
        s_mul_i32 s36, s35, 7282
        s_lshr_b32 s36, s36, 16
        s_mul_i32 s36, s36, {W_SPLIT - 9 * 1024}
        s_lshl_b32 s35, s35, 10
        s_add_u32 s{37+kk}, s35, s36
        """)
    e(f"""
    s_sub_u32 s38, s38, s37
    v_mul_lo_u32 v5, v6, s38
    v_lshrrev_b32 v7, 2, v2
    v_mul_u32_u24 v7, {18*1024}, v7
    v_add_u32 v5, v5, v7
    v_lshl_add_u32 v5, v3, 8, v5
    v_and_b32 v7, 3, v2
    v_lshl_add_u32 v5, v7, 6, v5
    s_mul_i32 s35, s33, {36 * 1024}
    s_add_u32 s37, s37, s35
    s_add_u32 s37, s37, {18 * STAGE}
    s_add_u32 s38, s37, {9 * 1024}
    """)
    def store(ec, reg):
        e(f"buffer_store_dwordx4 v[{reg}:{reg+3}], v5, s[24:27], s{37 + (ec >> 2)} offen offset:{(ec & 3) * 16}")
    emit_transpose_store(e, store)
    e("s_endpgm")

def emit_prep_kernel(e, name="prep_kernel"):
    kernel_head(e, name)
    n = N_KV_WG + N_W1_WG + N_WD_WG
    e(f"""
    s_cmp_ge_u32 s2, {N_KV_WG}
    s_cbranch_scc1 L_prep_w
    """)
    emit_kv(e)
    e(f"""
    L_prep_w:
    s_sub_u32 s3, s2, {N_KV_WG}
    s_cmp_ge_u32 s3, {N_W1_WG}
    s_cbranch_scc1 L_prep_wd
    """)
    emit_w1(e)
    e(f"""
    L_prep_wd:
    s_sub_u32 s3, s3, {N_W1_WG}
    s_cmp_ge_u32 s3, {N_WD_WG}
    s_cbranch_scc1 L_prep_end
    """)
    emit_wd(e)
    e("L_prep_end:\ns_endpgm")
    return dict(name=name, grid=n, block=256, lds=0, desc=kernel_desc(name, 104))
```

```python
import sys
from common import *
import k_prep, k_conv, k_ln, k_ffn
OUT = "interleave_layers__ssm_conv_h3__geglu_ffn__prompt.s"
P = dict(loop=1, out=OUT, extra=0)
for a in sys.argv[1:]:
    k, v = a.split("="); P[k] = v if k == "out" else int(v)
e = Asm()
kp = k_prep.emit_prep_kernel(e)
kc = k_conv.emit_conv_kernel(e)
ka = k_ln.emit_ln_kernel(e, "lna_kernel", "A")
kb = k_ln.emit_ln_kernel(e, "lnb_kernel", "B")
kf = k_ln.emit_ln_kernel(e, "fin_kernel", "F")
f0, f1 = k_ffn.emit_ffn(e, loop=bool(P["loop"]))
order = [kp, kc, ka, f0, kb, f1, kf]
allk = list(order)
if P["extra"]:
    kernel_head(e, "nop_kernel"); e("s_endpgm")
    kn = dict(name="nop_kernel", grid=1, block=64, lds=0, desc=kernel_desc("nop_kernel", 8))
    order += [kn] * P["extra"]; allk.append(kn)
ref = open(OUT + ".ref").read().split("\n")
hdr = [l for l in ref if l.startswith(";") and "@launch" not in l and "Override" not in l and "grid=ceil" not in l]
txt = "\n".join(hdr) + "\n"
for k in order:
    txt += f"; @launch kernel={k['name']} grid=({k['grid']},1,1) block=({k['block']},1,1) lds={k['lds']}\n"
txt += '.amdgcn_target "amdgcn-amd-amdhsa--gfx950"\n.text\n' + e.text()
txt += '.section .rodata,"a"\n'
for k in allk: txt += ".p2align 6\n" + k["desc"]
open(P["out"], "w").write(txt)
print("written", P["out"], len(txt))
```

```python
S, D, F = 2048, 576, 4608
MiB = 1 << 20
WS_W   = 0
W_SPLIT = 995328
STAGE = 36864
WS_KVT = 16 * MiB
WS_YT  = 19 * MiB
WS_XN  = [22 * MiB, 25 * MiB]
WS_X   = [28 * MiB, 31 * MiB]
WS_YR  = 34 * MiB
WS_P   = [40 * MiB, 80 * MiB]
ACT = S * D * 2
PBYTES = 16 * ACT
KA = dict(q=0, k=8, v=16, sk=24, h=32, D=40, bx=48, wg=56, wu=64, wd=72, out=80, dbg=88, ws=96)

class Asm:
    def __init__(self):
        self.L = []
    def __call__(self, s):
        for l in s.split("\n"):
            l = l.strip()
            if l: self.L.append(l if l.endswith(":") or l.startswith(".") else "    " + l)
    def text(self): return "\n".join(self.L) + "\n"

def vr(a, n=None):
    return f"v{a}" if n is None or n == 1 else f"v[{a}:{a+n-1}]"
def ar(a, n=4): return f"a[{a}:{a+n-1}]"
def sr(a, n): return f"s[{a}:{a+n-1}]"

def kernel_head(e, name):
    e(f".globl {name}\n.p2align 8\n.type {name},@function\n{name}:")

def kernel_desc(name, vgpr, agpr=0, sgpr=96):
    acc = (vgpr + 3) // 4 * 4
    nfv = vgpr if agpr == 0 else acc + agpr
    return f""".amdhsa_kernel {name}
  .amdhsa_next_free_vgpr {nfv}
  .amdhsa_next_free_sgpr {sgpr}
  .amdhsa_accum_offset {acc}
  .amdhsa_group_segment_fixed_size 0
  .amdhsa_kernarg_size 104
  .amdhsa_user_sgpr_count 2
  .amdhsa_user_sgpr_kernarg_segment_ptr 1
  .amdhsa_system_sgpr_workgroup_id_x 1
.end_amdhsa_kernel
"""

def srd(e, d, ptr, off, size):
    if off == 0:
        e(f"s_mov_b32 s{d}, s{ptr}\ns_mov_b32 s{d+1}, s{ptr+1}")
    else:
        e(f"s_add_u32 s{d}, s{ptr}, {off}\ns_addc_u32 s{d+1}, s{ptr+1}, 0")
    e(f"s_mov_b32 s{d+2}, {size}\ns_mov_b32 s{d+3}, 0x20000")

def unpack_lo(e, d, s): e(f"v_lshlrev_b32 v{d}, 16, v{s}")
def unpack_hi(e, d, s): e(f"v_and_b32 v{d}, 0xffff0000, v{s}")

WS_DBG = 128 * MiB
def stamp(e, i, on):
    if on: e(f"s_memtime s[{60+4*i}:{61+4*i}]\ns_memrealtime s[{62+4*i}:{63+4*i}]")
def stamp_flush(e, n, on, slot, wsp=10, wave=28):
    if not on: return
    e("s_waitcnt lgkmcnt(0)")
    srd(e, 56, wsp, WS_DBG + slot * 65536, 65536)
    e(f"s_lshl_b32 s54, s2, 2\ns_add_u32 s54, s54, s{wave}\ns_lshl_b32 s54, s54, 6\nv_mov_b32 v1, s54")
    for i in range(n):
        e(f"v_mov_b32 v2, s{60+4*i}\nv_mov_b32 v3, s{62+4*i}\nbuffer_store_dwordx2 v[2:3], v1, s[56:59], 0 offen offset:{8*i}\ns_nop 1")
```

```python
from common import *

V_LA, V_LAN = 1, 2
V_GA = [3, 4, 5]
V_ST = 6
V_C2 = 7
V_T = 8
V_OUT = 16
ACC = 24
FB = 56
HB0 = 130
NV = 204
S_W, S_XN, S_P = 12, 16, 20
S_WV = 28
S_C1 = 29
S_DMA = 30
S_SLOT = 31
S_RD = 32
S_ST0, S_ST1 = 33, 34
S_IDX = 35
S_CNT = 36
S_LANE16 = None
V_L16 = 202
C1 = 0xc0135761
C2 = 0xbdd2d3c8
import struct
def f2u(x): return struct.unpack('<I', struct.pack('<f', x))[0]
LOG2E = 1.4426950408889634
K = 2 * 0.7978845608028654
C1 = f2u(-LOG2E * K); C2 = f2u(-LOG2E * K * 0.044715)

OPT = dict(nogelu=0, nodma=0, nobar=0, nostore=0, stf='sc1', nolds=0, noidx=0, spx=4, dsp=1, novm=0)
def acc1(par, mat, mt): return ACC + 16 * par + 4 * (2 * mat + mt)
def acc2(tl, mt): return ACC + 4 * (2 * tl + mt)
def mfma(D_, A, B, first): return f"v_mfma_f32_16x16x32_bf16 v[{D_}:{D_+3}], v[{A}:{A+3}], {B}, " + ("0" if first else f"v[{D_}:{D_+3}]")

def gelu_ops(par, hreg):
    ops = []
    els = [(mt, i) for mt in range(2) for i in range(4)]
    def G(mt, i): return acc1(par, 0, mt) + i
    def U(mt, i): return acc1(par, 1, mt) + i
    for mt in range(2):
        E = [(mt, i) for i in range(4)]
        for (m, i) in E: ops.append(f"v_mul_f32 v{V_T+4*m+i}, v{G(m,i)}, v{G(m,i)}")
        for (m, i) in E: ops.append(f"v_fma_f32 v{V_T+4*m+i}, v{V_T+4*m+i}, v{V_C2}, s{S_C1}")
        for (m, i) in E: ops.append(f"v_mul_f32 v{V_T+4*m+i}, v{V_T+4*m+i}, v{G(m,i)}")
        for (m, i) in E: ops.append(f"v_exp_f32 v{V_T+4*m+i}, v{V_T+4*m+i}")
        for (m, i) in E: ops.append(f"v_mul_f32 v{U(m,i)}, v{G(m,i)}, v{U(m,i)}")
        for (m, i) in E: ops.append(f"v_add_f32 v{V_T+4*m+i}, 1.0, v{V_T+4*m+i}")
        for (m, i) in E: ops.append(f"v_rcp_f32 v{V_T+4*m+i}, v{V_T+4*m+i}")
        for (m, i) in E: ops.append(f"v_mul_f32 v{U(m,i)}, v{U(m,i)}, v{V_T+4*m+i}")
    cv = []
    for mt in range(2):
        for h in range(2):
            cv.append(f"v_cvt_pk_bf16_f32 v{hreg(mt)+h}, v{U(mt,2*h)}, v{U(mt,2*h+1)}")
    return ops, cv

def dma_ops():
    L = []
    for i in range(9):
        if i % 4 == 0: L.append(f"s_add_u32 m0, s{S_SLOT}, {(i//4)*4096}")
        L.append(f"buffer_load_dwordx4 v{V_GA[i//4]}, s[{S_W}:{S_W+3}], s{S_DMA} offen offset:{(i%4)*1024} lds")
    return L

def slot_update():
    return [f"s_add_u32 s{S_DMA}, s{S_DMA}, {STAGE}",
            f"s_add_u32 s{S_SLOT}, s{S_SLOT}, {STAGE}",
            f"s_cmp_ge_u32 s{S_SLOT}, {4*STAGE}",
            f"s_cselect_b32 s37, {4*STAGE}, 0",
            f"s_sub_u32 s{S_SLOT}, s{S_SLOT}, s37"]
def rd_update():
    return [f"s_add_u32 s{S_RD}, s{S_RD}, {STAGE}",
            f"s_cmp_eq_u32 s{S_RD}, {4*STAGE}",
            f"s_cselect_b32 s{S_RD}, 0, s{S_RD}"]

def keep(x):
    if OPT['nodma'] and x.endswith(" lds"): return False
    if OPT['nobar'] and x == "s_barrier": return False
    if OPT['nostore'] and x.startswith("buffer_store"): return False
    if OPT['nolds'] and x.startswith("ds_read"): return False
    if OPT['nogelu'] and x.startswith("v_") and not x.startswith("v_add_u32"): return False
    if OPT['noidx'] and x.startswith("s_set_gpr"): return False
    return True
def emit_sched(e, mf, pre, fill):
    for i, m in enumerate(mf):
        for x in pre.get(i, []):
            if OPT['novm'] and "vmcnt" in x: x = "s_waitcnt lgkmcnt(0)"
            if keep(x): e(x)
        e(m)
        for x in fill.get(i, []):
            if keep(x): e(x)

def add(d, i, x): d.setdefault(i, []).append(x)

def p1_stage(e, par, hreg, idx, la, lan, vmn, do_gelu=True, tail=()):
    mf = []; pre = {}; fill = {}
    for i in range(72):
        g, r = divmod(i, 12); mt, k = divmod(r, 6)
        mat = g & 1; kap = 6 * (g >> 1) + k
        A = FB + 36 * (g & 1) + 4 * k
        mf.append(mfma(acc1(par, mat, mt), A, ar((mt * 18 + kap) * 4), kap == 0))
        if r == 0:
            if g == 5:
                add(pre, i, f"s_waitcnt vmcnt({vmn}) lgkmcnt(0)"); add(pre, i, "s_barrier")
            else: add(pre, i, "s_waitcnt lgkmcnt(0)")
        if r < 6:
            d = FB + 36 * ((g + 1) & 1) + 4 * r
            if g < 5: add(fill, i, f"ds_read_b128 v[{d}:{d+3}], v{la} offset:{((g+1)*6+r)*1024}")
            else: add(fill, i, f"ds_read_b128 v[{d}:{d+3}], v{lan} offset:{r*1024}")
    if OPT['dsp']:
        pos = [12 * g + r for g in range(5) for r in (7, 10)][:9]
        n = 0
        for x in dma_ops():
            if x.startswith("s_add"): add(fill, pos[n] - 1, x)
            else: add(fill, pos[n], x); n += 1
        for s, x in zip([8, 20, 21], rd_update()): add(fill, s, x)
        for s, x in zip([56, 57, 58, 59, 65], slot_update()): add(fill, s, x)
    else:
        other = dma_ops() + slot_update() + rd_update()
        free = [12 * g + r for g in range(5) for r in range(6, 11)]
        assert len(other) <= len(free)
        for s, x in zip(free, other): add(fill, s, x)
    ops, cv = gelu_ops(1 - par, hreg)
    valu = list(ops) if do_gelu else []
    vs = 0
    for x in valu:
        add(fill, vs, x); vs += 1
    add(fill, 64, f"v_add_u32 v{la}, s{S_RD}, v{V_L16}")
    if do_gelu:
        if idx:
            add(fill, 66, f"s_set_gpr_idx_on s{S_IDX}, gpr_idx(DST)")
            for x in cv: add(fill, 66, x)
            add(fill, 66, "s_set_gpr_idx_off")
            add(fill, 67, f"s_add_u32 s{S_IDX}, s{S_IDX}, 2")
        else:
            for n, x in enumerate(cv): add(fill, 66 + n, x)
    for n, x in enumerate(tail): add(fill, 70 + n, x)
    emit_sched(e, mf, pre, fill)

def p2_stage(e, la, lan, vmn, off01, off23, first=False, tail=()):
    mf = []; pre = {}; fill = {}
    for i in range(72):
        tl, r = divmod(i, 18); mt, k2 = divmod(r, 9)
        A = FB + 36 * (tl & 1) + 4 * k2
        B = HB0 + 36 * mt + 4 * k2
        mf.append(mfma(acc2(tl, mt), A, f"v[{B}:{B+3}]", k2 == 0))
        if r == 0:
            if tl == 3:
                add(pre, i, f"s_waitcnt vmcnt({vmn}) lgkmcnt(0)"); add(pre, i, "s_barrier")
            else: add(pre, i, "s_waitcnt lgkmcnt(0)")
        if r < 9:
            d = FB + 36 * ((tl + 1) & 1) + 4 * r
            if tl < 3: add(fill, i, f"ds_read_b128 v[{d}:{d+3}], v{la} offset:{((tl+1)*9+r)*1024}")
            else: add(fill, i, f"ds_read_b128 v[{d}:{d+3}], v{lan} offset:{r*1024}")
    def outp(t0, off, s0):
        n = s0
        for x in out_ops(t0, off):
            add(fill, n, x)
            if not x.startswith("buffer"): n += 1
    if not first: outp(2, off23, 9)
    outp(0, off01, 45)
    if OPT['dsp']:
        pos = [2, 8, 19, 25, 30, 35, 38, 43, 51]
        n = 0
        for x in dma_ops():
            if x.startswith("s_add"): add(fill, pos[n] - 1, x)
            else: add(fill, pos[n], x); n += 1
        for n, x in enumerate(slot_update() + rd_update()): add(fill, 54 + n, x)
    else:
        n = 26
        for x in dma_ops():
            add(fill, n, x)
            if x.startswith("buffer"): n += 1
        for n, x in enumerate(slot_update() + rd_update()): add(fill, 36 + n, x)
    add(fill, 63, f"v_add_u32 v{la}, s{S_RD}, v{V_L16}")
    for n, x in enumerate(tail): add(fill, 64 + n, x)
    emit_sched(e, mf, pre, fill)

def out_ops(t0, off):
    L = []
    for mt in range(2):
        O = V_OUT + 4 * mt
        for h in range(2):
            a = acc2(t0 + h, mt)
            L.append(f"v_cvt_pk_bf16_f32 v{O+2*h}, v{a}, v{a+1}")
            L.append(f"v_cvt_pk_bf16_f32 v{O+2*h+1}, v{a+2}, v{a+3}")
        L.append(f"buffer_store_dwordx4 v[{O}:{O+3}], v{V_ST}, s[{S_P}:{S_P+3}], s{S_ST0+mt} offen offset:{off} {OPT['stf']}".rstrip())
    return L

def emit_ffn(e, loop=True, prof=False):
    ks = []
    for lay in range(2):
        name = f"ffn{lay}_kernel"
        kernel_head(e, name)
        e(f"s_mov_b32 s38, {WS_XN[lay]}\ns_mov_b32 s39, {WS_P[lay]}")
        if lay == 0: e("s_branch L_ffn_body")
        ks.append(dict(name=name, grid=256, block=256, lds=4 * STAGE, desc=kernel_desc(name, NV, 144)))
    e(f"""
    L_ffn_body:
    s_cmp_ge_u32 s2, 256
    s_cbranch_scc1 L_ffn_end
    s_load_dwordx2 s[10:11], s[0:1], {KA['ws']}
    """)
    stamp(e, 0, prof)
    e(f"""
    v_lshrrev_b32 v1, 6, v0
    v_and_b32 v2, 63, v0
    v_lshlrev_b32 v{V_L16}, 4, v2
    v_readfirstlane_b32 s{S_WV}, v1
    """)
    lg = OPT['spx'].bit_length() - 1
    e(f"""
    s_bfe_u32 s4, s2, {hex(((4-lg) << 16) if lg >= 1 else 0)}
    s_and_b32 s4, s4, 7
    s_lshl_b32 s4, s4, {lg}
    s_bfe_u32 s5, s2, {hex((lg << 16) | 3)}
    s_add_u32 s4, s4, s5
    s_lshr_b32 s5, s2, {3 + lg}
    s_lshl_b32 s5, s5, {lg - 1}
    s_and_b32 s6, s2, 7
    s_lshr_b32 s6, s6, {4 - lg}
    s_add_u32 s5, s5, s6
    s_mul_i32 s6, s4, {W_SPLIT}
    s_mul_i32 s7, s{S_WV}, 9216
    v_add_u32 v{V_GA[0]}, s7, v{V_L16}
    v_add_u32 v{V_GA[1]}, 4096, v{V_GA[0]}
    v_add_u32 v{V_GA[2]}, 8192, v{V_GA[0]}
    s_mov_b32 s{S_DMA}, 0
    s_mov_b32 s{S_SLOT}, s7
    s_waitcnt lgkmcnt(0)
    s_add_u32 s{S_W}, s10, s6
    s_addc_u32 s{S_W+1}, s11, 0
    s_mov_b32 s{S_W+2}, {W_SPLIT}
    s_mov_b32 s{S_W+3}, 0x20000
    s_add_u32 s{S_XN}, s10, s38
    s_addc_u32 s{S_XN+1}, s11, 0
    s_mov_b32 s{S_XN+2}, {ACT}
    s_mov_b32 s{S_XN+3}, 0x20000
    """)
    def dma_stage():
        for x in dma_ops():
            e(x)
            if x.startswith("s_add"): e("s_nop 0")
        e(f"s_add_u32 s{S_DMA}, s{S_DMA}, {STAGE}\ns_add_u32 s{S_SLOT}, s{S_SLOT}, {STAGE}")
    dma_stage()
    e(f"""
    s_lshl_b32 s8, s5, 2
    s_add_u32 s8, s8, s{S_WV}
    s_mul_i32 s9, s8, {2*18432}
    """)
    for n in range(36):
        e(f"buffer_load_dwordx4 {ar(4*n)}, v{V_L16}, s[{S_XN}:{S_XN+3}], s9 offen offset:{(n%4)*1024}")
        if n % 4 == 3 and n < 35: e("s_add_u32 s9, s9, 4096")
    dma_stage(); dma_stage()
    e(f"""
    s_add_u32 s{S_P}, s10, s39
    s_addc_u32 s{S_P+1}, s11, 0
    s_mov_b32 s{S_P+2}, {PBYTES}
    s_mov_b32 s{S_P+3}, 0x20000
    s_mul_i32 s{S_ST0}, s8, {4*147456}
    s_mul_i32 s9, s4, 9216
    s_add_u32 s{S_ST0}, s{S_ST0}, s9
    s_add_u32 s{S_ST1}, s{S_ST0}, {2*147456}
    s_mov_b32 s9, 147456
    v_bfe_u32 v8, v2, 3, 1
    v_mul_lo_u32 v{V_ST}, v8, s9
    v_bfe_u32 v8, v2, 1, 2
    v_mul_u32_u24 v8, 2304, v8
    v_add_u32 v{V_ST}, v{V_ST}, v8
    v_and_b32 v8, 1, v2
    v_lshl_add_u32 v{V_ST}, v8, 4, v{V_ST}
    v_lshrrev_b32 v8, 4, v2
    v_lshl_add_u32 v{V_ST}, v8, 5, v{V_ST}
    v_mov_b32 v{V_C2}, {hex(C2)}
    s_mov_b32 s{S_C1}, {hex(C1)}
    v_mov_b32 v{V_LA}, v{V_L16}
    v_add_u32 v{V_LAN}, {STAGE}, v{V_L16}
    s_mov_b32 s{S_RD}, {STAGE}
    s_mov_b32 s{S_IDX}, 0
    s_mov_b32 s{S_CNT}, 0
    s_waitcnt vmcnt(18)
    s_barrier
    """)
    stamp(e, 1, prof)
    for r in range(6): e(f"ds_read_b128 v[{FB+4*r}:{FB+4*r+3}], v{V_LA} offset:{r*1024}")
    R = [V_LA, V_LAN]
    if loop:
        e(".p2align 6\nL_ffn_p1:")
        hreg = lambda mt: HB0 - 2 + 36 * mt
        p1_stage(e, 0, hreg, True, R[0], R[1], 18)
        p1_stage(e, 1, hreg, True, R[1], R[0], 18, tail=[f"s_add_u32 s{S_CNT}, s{S_CNT}, 1", f"s_cmp_lt_u32 s{S_CNT}, 9"])
        e("s_cbranch_scc1 L_ffn_p1")
    else:
        for c in range(18):
            p1_stage(e, c & 1, lambda mt: HB0 + 36 * mt + 2 * (c - 1), False, R[c & 1], R[1 - (c & 1)], 18, do_gelu=(c > 0))
    stamp(e, 2, prof)
    for r in range(6, 9): e(f"ds_read_b128 v[{FB+4*r}:{FB+4*r+3}], v{R[0]} offset:{r*1024}")
    ops, cv = gelu_ops(1, lambda mt: HB0 + 36 * mt + 34)
    for x in ops + cv: e(x)
    e("s_nop 1")
    stamp(e, 3, prof)
    if loop:
        raise_first = True
        p2_stage(e, R[0], R[1], 20, 0, 0, first=True)
        e(f"s_mov_b32 s{S_CNT}, 0")
        e(".p2align 6\nL_ffn_p2:")
        p2_stage(e, R[1], R[0], 24, 256, 128)
        p2_stage(e, R[0], R[1], (27 if OPT['dsp'] else 28), 512, 384, tail=[f"s_add_u32 s{S_ST0}, s{S_ST0}, 512", f"s_add_u32 s{S_ST1}, s{S_ST1}, 512",
                 f"s_add_u32 s{S_CNT}, s{S_CNT}, 1", f"s_cmp_lt_u32 s{S_CNT}, 4"])
        e("s_cbranch_scc1 L_ffn_p2")
        last = 128
    else:
        for st in range(9):
            vmn = [20, 24][st] if st < 2 else (27 if OPT['dsp'] else 28)
            p2_stage(e, R[st & 1], R[1 - (st & 1)], vmn, 256 * st, 256 * st - 128, first=(st == 0))
        last = 256 * 8 + 128
    e("s_nop 7")
    for x in out_ops(2, last): e(x)
    stamp(e, 4, prof)
    if prof:
        e("s_waitcnt vmcnt(0)")
        stamp(e, 5, prof)
        e(f"s_cmp_eq_u32 s38, {WS_XN[0]}\ns_cselect_b32 s53, 0, 65536\ns_add_u32 s10, s10, s53\ns_addc_u32 s11, s11, 0")
        stamp_flush(e, 6, prof, 0)
    e("L_ffn_end:\ns_endpgm")
    return ks
```

```python
from common import *

N_CONV = 144
N_SH = 112
CONV_LDS_W = 21760
UB, HB, HSTR = 0, 5120, 4160
NT_W1 = 1296
NT_WD = 648
OPT = dict(ystf="", wstf="", flagws=0)
WS_FLAG = 120 * MiB
FLAG_STRIDE = 256
SPIN_MAX = 200000

def wd_addr_setup(e, vl, vs, vkk, t1, t2):
    e(f"""
    v_and_b32 v{t1}, 7, v0
    v_bfe_u32 v{t2}, v0, 3, 2
    v_bfe_u32 v{vkk}, v0, 5, 1
    v_lshlrev_b32 v{vl}, 5, v{t2}
    v_lshl_add_u32 v{vl}, v{vkk}, 1, v{vl}
    v_mul_u32_u24 v{vl}, 1152, v{vl}
    v_lshl_add_u32 v{vl}, v{t1}, 4, v{vl}
    v_lshrrev_b32 v{vs}, 2, v{t1}
    v_mul_u32_u24 v{vs}, {18*1024}, v{vs}
    v_lshl_add_u32 v{vs}, v{t2}, 8, v{vs}
    v_and_b32 v{t1}, 3, v{t1}
    v_lshl_add_u32 v{vs}, v{t1}, 6, v{vs}
    """)

def wd_loads(e, sT, stp, sog, R, vl, srd_):
    e(f"""
    s_mul_i32 s{stp}, s{sT}, 7282
    s_lshr_b32 s{stp}, s{stp}, 16
    s_mul_i32 s35, s{stp}, 9
    s_sub_u32 s{sog}, s{sT}, s35
    s_lshr_b32 s34, s{stp}, 1
    s_lshl_b32 s34, s34, 7
    s_and_b32 s35, s{stp}, 1
    s_lshl_b32 s35, s35, 2
    s_add_u32 s34, s34, s35
    s_mul_i32 s34, s34, 1152
    s_lshl_b32 s35, s{sog}, 7
    s_add_u32 s34, s34, s35
    """)
    for r in range(4):
        e(f"buffer_load_dwordx4 v[{R+4*r}:{R+4*r+3}], v{vl}, s[{srd_}:{srd_+3}], s34 offen")
        e(f"buffer_load_dwordx4 v[{R+16+4*r}:{R+16+4*r+3}], v{vl}, s[{srd_}:{srd_+3}], s34 offen offset:1152")
        if r < 3: e("s_add_u32 s34, s34, 9216")

def wd_stores(e, stp, sog, R, vs, vkk, va, srd_, T0, wait):
    for kk in range(2):
        e(f"""
        s_lshl_b32 s35, s{stp}, 1
        s_add_u32 s35, s35, {kk}
        s_mul_i32 s36, s35, 7282
        s_lshr_b32 s36, s36, 16
        s_mul_i32 s36, s36, {W_SPLIT - 9 * 1024}
        s_lshl_b32 s35, s35, 10
        s_add_u32 s{37+kk}, s35, s36
        """)
    e(f"""
    s_sub_u32 s38, s38, s37
    v_mul_lo_u32 v{va}, v{vkk}, s38
    v_add_u32 v{va}, v{va}, v{vs}
    s_mul_i32 s35, s{sog}, {36 * 1024}
    s_add_u32 s37, s37, s35
    s_add_u32 s37, s37, {18 * STAGE}
    s_add_u32 s38, s37, {9 * 1024}
    """)
    if wait is not None: e(f"s_waitcnt vmcnt({wait})")
    def store(ec, reg):
        e(f"buffer_store_dwordx4 v[{reg}:{reg+3}], v{va}, s[{srd_}:{srd_+3}], s{37 + (ec >> 2)} offen offset:{(ec & 3) * 16} {OPT['wstf']}")
    transpose_store(e, R, store, T0)

def emit_conv(e, prof):
    e(f"""
    s_load_dwordx4 s[36:39], s[0:1], {KA['k']}
    s_load_dwordx2 s[8:9], s[0:1], {KA['sk']}
    s_load_dwordx4 s[4:7], s[0:1], {KA['h']}
    s_load_dwordx2 s[10:11], s[0:1], {KA['ws']}
    s_load_dwordx2 s[52:53], s[0:1], {KA['wd']}
    s_load_dwordx2 s[96:97], s[0:1], {KA['dbg']}
    """)
    stamp(e, 0, prof)
    e(f"""
    v_lshrrev_b32 v1, 6, v0
    v_and_b32 v2, 63, v0
    v_and_b32 v3, 15, v0
    v_readfirstlane_b32 s28, v1
    v_bfe_u32 v4, v0, 4, 2
    s_lshl_b32 s29, s3, 2
    v_lshlrev_b32 v5, 4, v2
    s_add_u32 s29, s29, s28
    s_mul_i32 s30, s28, {CONV_LDS_W}
    s_lshl_b32 s31, s29, 12
    s_lshr_b32 s32, s29, 6
    s_and_b32 s33, s29, 63
    s_mul_i32 s34, s33, {32*1152}
    s_lshl_b32 s35, s32, 7
    s_add_u32 s34, s34, s35
    v_mul_u32_u24 v6, 9216, v4
    v_lshl_add_u32 v6, v3, 3, v6
    v_add_u32 v6, s34, v6
    s_lshl_b32 s34, s32, 9
    v_lshl_add_u32 v7, v3, 5, s34
    v_subrev_u32 v10, 3456, v6
    v_subrev_u32 v11, 2304, v6
    v_subrev_u32 v12, 1152, v6
    v_add_u32 v13, 4608, v6
    s_waitcnt lgkmcnt(0)
    """)
    stamp(e, 1, prof)
    srd(e, 16, 36, 0, ACT); srd(e, 20, 38, 0, ACT); srd(e, 24, 8, 0, D * 8)
    KR, VR, WL = 72, 96, 64
    e(f"buffer_load_dwordx4 v[{WL}:{WL+3}], v7, s[24:27], 0 offen")
    e(f"buffer_load_dwordx4 v[{WL+4}:{WL+7}], v7, s[24:27], 0 offen offset:16")
    for r in range(11):
        if r < 3: e(f"buffer_load_dwordx2 v[{KR+2*r}:{KR+2*r+1}], v{10+r}, s[16:19], 0 offen")
        else:
            rr = r - 3
            e(f"buffer_load_dwordx2 v[{KR+2*r}:{KR+2*r+1}], v{6 if rr < 4 else 13}, s[16:19], 0 offen offset:{(rr%4)*1152}")
            e(f"buffer_load_dwordx2 v[{VR+2*rr}:{VR+2*rr+1}], v{6 if rr < 4 else 13}, s[20:23], 0 offen offset:{(rr%4)*1152}")
    e("""
    s_add_u32 s12, s4, s31
    s_addc_u32 s13, s5, 0
    s_mov_b32 s14, 4096
    s_mov_b32 s15, 0x20000
    """)
    srd(e, 24, 6, 0, D * 2)
    HW = 192
    for r in range(4):
        e(f"buffer_load_dwordx4 v[{HW+6*r}:{HW+3+6*r}], v5, s[12:15], 0 offen offset:{1024*r}")
        e(f"buffer_load_dwordx2 v[{HW+4+6*r}:{HW+5+6*r}], v5, s[12:15], 0 offen offset:{1024*r+16}")
    e(f"""
    v_subrev_u32 v7, 48, v5
    s_lshl_b32 s34, s29, 1
    v_mov_b32 v9, s34
    buffer_load_dwordx2 v[{HW+28}:{HW+29}], v7, s[12:15], 0 offen
    buffer_load_ushort v8, v9, s[24:27], 0 offen
    """)
    WD = 224
    wd_addr_setup(e, 10, 15, 14, 11, 12)
    srd(e, 20, 52, 0, D * F * 2)
    wd_loads(e, 29, 42, 43, WD, 10, 20)
    NA = 18
    srd(e, 48, 10, WS_YT, ACT); srd(e, 16, 10, WS_KVT, ACT); srd(e, 24, 10, WS_W, 16 * W_SPLIT)
    if OPT['flagws']: srd(e, 92, 10, WS_FLAG, 4096)
    else: srd(e, 92, 96, 0, 256)
    e("s_mov_b32 s40, 0x05040100\ns_mov_b32 s41, 0x07060302")
    e(f"""
    s_lshl_b32 s34, s32, 18
    s_lshl_b32 s35, s33, 6
    s_add_u32 s44, s34, s35
    v_lshlrev_b32 v13, 14, v3
    v_lshl_add_u32 v13, v4, 4, v13
    """)
    WP = 156
    KF = 112
    RS = 16
    TT = 172
    def unk(r):
        for p in range(2):
            unpack_lo(e, KF + 4*r + 2*p, KR + 2*r + p); unpack_hi(e, KF + 4*r + 2*p + 1, KR + 2*r + p)
    stamp(e, 2, prof)
    e(f"s_waitcnt vmcnt({NA + 16})")
    stamp(e, 3, prof)
    for p in range(2):
        for t in range(4):
            for c in range(2):
                src = WL + 2 * (2 * p + c) + (t >> 1)
                (unpack_lo if t % 2 == 0 else unpack_hi)(e, WP + 8 * p + 2 * t + c, src)
    for r in range(3): unk(r)
    for r in range(8):
        e(f"s_waitcnt vmcnt({NA + 16 - 2*(r+1)})")
        unk(r + 3)
        for p in range(2):
            for t in range(4):
                a = TT + 10*p + 2*t; k = KF + 4*(r+t) + 2*p; w = WP + 8*p + 2*(3-t)
                e(f"v_pk_mul_f32 v[{a}:{a+1}], v[{k}:{k+1}], v[{w}:{w+1}]")
        for t in range(4):
            for p in range(2):
                a = TT + 10*p + 2*t
                e(f"v_cvt_pk_bf16_f32 v{a}, v{a}, v{a+1}")
        for t in range(4):
            for p in range(2):
                a = TT + 10*p + 2*t
                unpack_hi(e, a + 1, a); unpack_lo(e, a, a)
        for p in range(2):
            a = TT + 10*p + 8
            unpack_lo(e, a, VR + 2*r + p); unpack_hi(e, a + 1, VR + 2*r + p)
        for t in range(1, 4):
            for p in range(2):
                a = TT + 10*p
                e(f"v_pk_add_f32 v[{a}:{a+1}], v[{a}:{a+1}], v[{a+2*t}:{a+2*t+1}]")
            for p in range(2):
                a = TT + 10*p
                e(f"v_cvt_pk_bf16_f32 v{a}, v{a}, v{a+1}")
            for p in range(2):
                a = TT + 10*p
                unpack_hi(e, a + 1, a); unpack_lo(e, a, a)
        for p in range(2):
            a = TT + 10*p; d = RS + 4*r + 2*p
            e(f"v_pk_mul_f32 v[{d}:{d+1}], v[{a}:{a+1}], v[{a+8}:{a+9}]")
    for c in range(4):
        for p in range(4):
            e(f"v_cvt_pk_bf16_f32 v{48+4*c+p}, v{RS+4*(7-2*p)+c}, v{RS+4*(6-2*p)+c}")
        e(f"buffer_store_dwordx4 v[{48+4*c}:{48+4*c+3}], v13, s[16:19], s44 offen sc1")
        if c < 3: e("s_add_u32 s44, s44, 4096")
    stamp(e, 4, prof)
    e(f"""
    v_mov_b32 v{HW+24}, 0
    v_mov_b32 v{HW+25}, 0
    v_mov_b32 v{HW+26}, 0
    v_mov_b32 v{HW+27}, 0
    v_mul_u32_u24 v9, 1280, v4
    v_lshl_add_u32 v9, v3, 4, v9
    v_add_u32 v9, s30, v9
    ds_write_b128 v9, v[{HW+24}:{HW+27}] offset:{UB}
    v_add_u32 v10, s30, v5
    s_waitcnt vmcnt(12)
    """)
    T = 72
    def copies(W, addr, off):
        e(f"ds_write_b128 v{addr}, v[{W}:{W+3}] offset:{HB + off}")
        for i in range(4): e(f"v_alignbit_b32 v{T+i}, v{W+i+1}, v{W+i}, 16")
        for i in range(4): e(f"v_mov_b32 v{T+4+i}, v{W+i+1}")
        for i in range(4): e(f"v_alignbit_b32 v{T+8+i}, v{W+i+2}, v{W+i+1}, 16")
        for a in range(1, 4):
            e(f"ds_write_b128 v{addr}, v[{T+4*(a-1)}:{T+4*(a-1)+3}] offset:{HB + a*HSTR + off}")
    for r in range(2):
        copies(HW + 6*r, 10, 1024*r + 64)
        T += 12
    fs = FLAG_STRIDE if OPT['flagws'] else 4
    e(f"""
    s_mul_i32 s45, s32, {fs}
    v_mov_b32 v11, 1
    v_mov_b32 v12, s45
    s_waitcnt vmcnt(0)
    s_barrier
    s_cmp_lg_u32 s28, 0
    s_cbranch_scc1 L_conv_nosig
    s_mov_b64 exec, 1
    buffer_atomic_add v11, v12, s[92:95], 0 offen sc1
    s_mov_b64 exec, -1
    L_conv_nosig:
    """)
    stamp(e, 5, prof)
    for r in range(2, 4):
        copies(HW + 6*r, 10, 1024*r + 64)
        T += 12
    e("s_mov_b64 exec, 15")
    copies(HW + 24, 10, 0)
    e("s_mov_b64 exec, -1")
    wd_stores(e, 42, 43, WD, 15, 14, 7, 24, 16, None)
    e(f"""
    v_lshlrev_b32 v8, 16, v8
    v_add_u32 v11, 1, v3
    v_and_b32 v13, 3, v11
    v_sub_u32 v11, v11, v13
    v_lshlrev_b32 v14, 3, v4
    v_sub_u32 v11, v11, v14
    v_lshlrev_b32 v11, 1, v11
    v_mul_u32_u24 v13, {HSTR}, v13
    v_add3_u32 v11, v11, v13, s30
    v_add_u32 v11, {HB + 48}, v11
    v_and_b32 v14, 3, v2
    v_mul_u32_u24 v14, 1280, v14
    v_lshrrev_b32 v15, 2, v2
    v_lshl_add_u32 v14, v15, 4, v14
    v_add_u32 v14, s30, v14
    """)
    for i in range(32): e(f"v_mov_b32 v{112+i}, 0")
    e(f"""
    s_cmp_lg_u32 s28, 0
    s_cbranch_scc1 L_conv_polled
    s_mov_b32 s46, 0
    L_conv_poll:
    buffer_load_dword v13, v12, s[92:95], 0 offen sc1
    s_add_u32 s46, s46, 1
    s_waitcnt vmcnt(0)
    v_readfirstlane_b32 s47, v13
    s_cmp_ge_u32 s47, 16
    s_cbranch_scc1 L_conv_polled
    s_cmp_lt_u32 s46, {SPIN_MAX}
    s_cbranch_scc1 L_conv_poll
    L_conv_polled:
    s_barrier
    """)
    for i in range(4): e(f"buffer_load_dwordx4 v[{16+4*i}:{19+4*i}], v5, s[16:19], s31 offen offset:{1024*i} sc1")
    e("v_add_u32 v12, 240, v9")
    for i in range(4):
        e(f"s_waitcnt vmcnt({3-i})")
        e(f"ds_write_b128 v14, v[{16+4*i}:{19+4*i}] offset:{UB + 256 + 256*i}")
    FB = [16, 64]
    ACC = 112
    e("s_waitcnt lgkmcnt(0)")
    stamp(e, 6, prof)
    def acc(t, mt): return ACC + 4 * (2 * t + mt)
    def reads(buf, jo):
        L = []
        for b in range(4):
            r = FB[buf] + 32 + 4 * b
            L.append(f"ds_read_b128 v[{r}:{r+3}], v12 offset:{UB + 16 - 16*jo + 256*b}")
        for a in range(4):
            for mt in range(2):
                r = FB[buf] + 4 * (2 * a + mt)
                o = 64 * jo + 1024 * a + 32 * mt
                L.append(f"ds_read_b64 v[{r}:{r+1}], v11 offset:{o}")
                L.append(f"ds_read_b64 v[{r+2}:{r+3}], v11 offset:{o+8}")
        return L
    def step(buf, rd, extra=()):
        mf = [(t, a, mt) for a in range(4) for mt in range(2) for t in range(a, 4)]
        rd = list(rd); extra = list(extra)
        for i, (t, a, mt) in enumerate(mf):
            A = FB[buf] + 4 * (2 * a + mt); B = FB[buf] + 32 + 4 * (t - a); C = acc(t, mt)
            if i == 0: e("s_waitcnt lgkmcnt(0)")
            e(f"v_mfma_f32_16x16x32_bf16 v[{C}:{C+3}], v[{A}:{A+3}], v[{B}:{B+3}], v[{C}:{C+3}]")
            for _ in range(2):
                if rd: e(rd.pop(0))
            if not rd and extra: e(extra.pop(0))
        for x in extra: e(x)
    for r in reads(0, 0): e(r)
    e("s_mov_b32 s33, 0")
    e("L_conv_loop:")
    step(0, reads(1, 1), [f"v_add_u32 v11, 128, v11", "v_subrev_u32 v12, 32, v12"])
    step(1, reads(0, 0), ["s_add_u32 s33, s33, 1", "s_cmp_lt_u32 s33, 8"])
    e("s_cbranch_scc1 L_conv_loop")
    e(f"""
    s_waitcnt lgkmcnt(0)
    v_lshrrev_b32 v13, 1, v4
    v_mul_u32_u24 v13, 1280, v13
    v_lshl_add_u32 v13, v3, 4, v13
    v_and_b32 v14, 1, v4
    v_xor_b32 v14, 1, v14
    v_lshl_add_u32 v13, v14, 3, v13
    v_add_u32 v13, s30, v13
    """)
    U = 16
    for t in range(4):
        for mt in range(2):
            r = U + 2 * (2 * t + mt)
            e(f"ds_read_b64 v[{r}:{r+1}], v13 offset:{UB + 256 + mt*2560 + t*256}")
    e(f"""
    v_and_b32 v14, 1, v4
    v_lshrrev_b32 v15, 1, v4
    v_lshl_add_u32 v14, v14, 1, v15
    v_lshl_add_u32 v14, v3, 2, v14
    v_mul_u32_u24 v14, 9216, v14
    s_lshl_b32 s34, s29, 4
    v_mov_b32 v9, v8
    s_waitcnt lgkmcnt(0)
    """)
    T = 40
    for t in range(4):
        O = 64 + 4 * t
        for mt in range(2):
            r = U + 2 * (2 * t + mt); C = acc(t, mt)
            unpack_hi(e, T, r + 1); unpack_lo(e, T + 1, r + 1); unpack_hi(e, T + 2, r); unpack_lo(e, T + 3, r)
            e(f"v_cvt_pk_bf16_f32 v{T+6}, v{C}, v{C+1}")
            e(f"v_cvt_pk_bf16_f32 v{T+7}, v{C+2}, v{C+3}")
            for i in range(0, 4, 2): e(f"v_pk_mul_f32 v[{T+i}:{T+i+1}], v[{T+i}:{T+i+1}], v[8:9]")
            unpack_lo(e, T + 8, T + 6); unpack_hi(e, T + 9, T + 6); unpack_lo(e, T + 10, T + 7); unpack_hi(e, T + 11, T + 7)
            e(f"v_cvt_pk_bf16_f32 v{T+4}, v{T}, v{T+1}")
            e(f"v_cvt_pk_bf16_f32 v{T+5}, v{T+2}, v{T+3}")
            unpack_lo(e, T, T + 4); unpack_hi(e, T + 1, T + 4); unpack_lo(e, T + 2, T + 5); unpack_hi(e, T + 3, T + 5)
            for i in range(0, 4, 2): e(f"v_pk_add_f32 v[{T+i}:{T+i+1}], v[{T+i}:{T+i+1}], v[{T+8+i}:{T+9+i}]")
            e(f"v_cvt_pk_bf16_f32 v{O+2*mt}, v{T}, v{T+1}")
            e(f"v_cvt_pk_bf16_f32 v{O+2*mt+1}, v{T+2}, v{T+3}")
        e("s_nop 1")
        e(f"v_permlane16_swap_b32 v{O}, v{O+2}")
        e(f"v_permlane16_swap_b32 v{O+1}, v{O+3}")
        e(f"buffer_store_dwordx4 v[{O}:{O+3}], v14, s[48:51], s34 offen {OPT['ystf']}")
        if t < 3: e(f"s_add_u32 s34, s34, {64*9216}")
    if prof:
        e("s_waitcnt vmcnt(0)")
        stamp(e, 7, prof)
        stamp_flush(e, 8, prof, 2)
    e("s_endpgm")

def transpose_store(e, R, store, T0=16):
    for dw in range(4):
        T = T0 + 8 * (dw & 1)
        for h in range(2):
            for p in range(4):
                e(f"v_perm_b32 v{T+4*h+p}, v{R+4*(2*p+1)+dw}, v{R+4*(2*p)+dw}, s{40+h}")
        for h in range(2):
            store(2 * dw + h, T + 4 * h)

def emit_shuffle(e, prof):
    e(f"""
    s_load_dwordx4 s[4:7], s[0:1], {KA['wg']}
    s_load_dwordx2 s[8:9], s[0:1], {KA['wd']}
    s_load_dwordx2 s[10:11], s[0:1], {KA['ws']}
    """)
    stamp(e, 0, prof)
    e(f"""
    v_lshrrev_b32 v1, 6, v0
    v_and_b32 v2, 15, v0
    v_bfe_u32 v3, v0, 4, 2
    v_readfirstlane_b32 s28, v1
    s_lshl_b32 s29, s3, 2
    s_mov_b32 s40, 0x05040100
    s_mov_b32 s41, 0x07060302
    s_add_u32 s29, s29, s28
    v_mul_u32_u24 v4, 73728, v3
    v_lshl_add_u32 v4, v2, 4, v4
    v_and_b32 v5, 63, v0
    v_lshlrev_b32 v5, 4, v5
    """)
    wd_addr_setup(e, 9, 10, 8, 6, 7)
    e("s_waitcnt lgkmcnt(0)")
    stamp(e, 1, prof)
    srd(e, 12, 4, 0, D * F * 2); srd(e, 16, 6, 0, D * F * 2); srd(e, 20, 8, 0, D * F * 2); srd(e, 24, 10, WS_W, 16 * W_SPLIT)
    RB = 32
    BIG = 0x7f000000
    for i in range(3):
        sb, sk_, sm = 42 + 3 * i, 43 + 3 * i, 44 + 3 * i
        e(f"""
        s_add_u32 s30, s29, {448*i}
        s_cmp_ge_u32 s30, 648
        s_cselect_b32 s31, 648, 0
        s_cselect_b32 s{sm}, 1, 0
        s_sub_u32 s30, s30, s31
        s_mul_i32 s{sb}, s30, 3641
        s_lshr_b32 s{sb}, s{sb}, 16
        s_mul_i32 s31, s{sb}, 18
        s_sub_u32 s{sk_}, s30, s31
        s_mul_i32 s34, s{sk_}, 294912
        s_lshl_b32 s35, s{sb}, 8
        s_add_u32 s34, s34, s35
        """)
        if i == 2:
            e(f"s_cmp_ge_u32 s30, 648\ns_cselect_b32 s34, {BIG}, s34")
        if i == 1:
            e(f"s_cmp_eq_u32 s{sm}, 1\ns_cbranch_scc1 L_sh_m1")
            for sr_ in (12, 16):
                if sr_ == 16: e("L_sh_m1:")
                for r in range(8):
                    e(f"buffer_load_dwordx4 v[{RB+32*i+4*r}:{RB+32*i+4*r+3}], v4, s[{sr_}:{sr_+3}], s34 offen")
                    if r < 7: e("s_add_u32 s34, s34, 9216")
                if sr_ == 12: e("s_branch L_sh_m2")
            e("L_sh_m2:")
        else:
            sr_ = 12 if i == 0 else 16
            for r in range(8):
                e(f"buffer_load_dwordx4 v[{RB+32*i+4*r}:{RB+32*i+4*r+3}], v4, s[{sr_}:{sr_+3}], s34 offen")
                if r < 7: e("s_add_u32 s34, s34, 9216")
    R = RB + 96
    e(f"""
    s_cmp_lt_u32 s29, 376
    s_cbranch_scc1 L_sh_nold
    s_add_u32 s30, s29, 200
    """)
    wd_loads(e, 30, 51, 52, R, 9, 20)
    e("s_branch L_sh_ld2\nL_sh_nold:")
    e(f"s_mov_b32 s34, {BIG}")
    for r in range(8): e(f"buffer_load_dword v{R+r}, v5, s[20:23], s34 offen")
    e("L_sh_ld2:")
    stamp(e, 2, prof)
    nld = 32
    nst = 0
    for i in range(3):
        sb, sk_, sm = 42 + 3 * i, 43 + 3 * i, 44 + 3 * i
        e(f"""
        s_mul_i32 s35, s{sk_}, 43
        s_lshr_b32 s35, s35, 8
        s_add_u32 s35, s35, s{sm}
        s_mul_i32 s36, s35, 6
        s_add_u32 s36, s36, s{sk_}
        s_lshl_b32 s36, s36, 10
        s_lshl_b32 s37, s{sb}, 3
        """)
        if i == 2: e(f"s_cmp_ge_u32 s{sb}, 36\ns_cbranch_scc1 L_sh_w1done")
        e(f"s_waitcnt vmcnt({min(63, nld - 8*(i+1) + nst)})")
        if i == 0: stamp(e, 3, prof)
        def store(ec, reg):
            e(f"""
            s_mul_i32 s38, s37, 3641
            s_lshr_b32 s38, s38, 16
            s_mul_i32 s38, s38, {W_SPLIT - 18 * STAGE}
            s_mul_i32 s39, s37, {STAGE}
            s_add_u32 s38, s38, s39
            s_add_u32 s38, s38, s36
            s_add_u32 s37, s37, 1
            buffer_store_dwordx4 v[{reg}:{reg+3}], v5, s[24:27], s38 offen {OPT['wstf']}
            """)
        transpose_store(e, RB + 32 * i, store)
        nst += 8
    e("L_sh_w1done:")
    stamp(e, 4, prof)
    e("s_cmp_lt_u32 s29, 376\ns_cbranch_scc1 L_sh_done")
    wd_stores(e, 51, 52, RB + 96, 10, 8, 11, 24, 16, 16)
    e("L_sh_done:")
    stamp(e, 5, prof); stamp(e, 6, prof)
    if prof:
        e("s_waitcnt vmcnt(0)")
        stamp(e, 7, prof)
        stamp_flush(e, 8, prof, 2)
    e("s_endpgm")

def emit_front_kernel(e, name="front_kernel", prof=False):
    kernel_head(e, name)
    e(f"""
    s_cmp_ge_u32 s2, 256
    s_cbranch_scc1 L_front_end
    s_and_b32 s4, s2, 7
    s_lshr_b32 s5, s2, 3
    s_mul_i32 s3, s4, 18
    s_add_u32 s3, s3, s5
    s_cmp_lt_u32 s5, 18
    s_cbranch_scc1 L_front_conv
    s_sub_u32 s3, s2, 144
    """)
    emit_shuffle(e, prof)
    e("L_front_conv:")
    emit_conv(e, prof)
    e("L_front_end:\ns_endpgm")
    return dict(name=name, grid=256, block=256, lds=4 * CONV_LDS_W, desc=kernel_desc(name, 256, sgpr=102))
```

```python
import sys
from common import *
import k_prep, k_conv, k_ln, k_ffn, k_front
OUT = "interleave_layers__ssm_conv_h3__geglu_ffn__prompt.s"
P = dict(loop=1, out=OUT, extra=0, prof=0, front=1)
for a in sys.argv[1:]:
    k, v = a.split("=")
    if k in k_ffn.OPT: k_ffn.OPT[k] = v.replace("+", " ") if k == "stf" else int(v)
    elif k in k_front.OPT: k_front.OPT[k] = v.replace("+", " ") if k.endswith("stf") else int(v)
    else: P[k] = v if k == "out" else int(v)
e = Asm()
if P["front"]:
    fr = [k_front.emit_front_kernel(e, prof=bool(P["prof"]))]
else:
    fr = [k_prep.emit_prep_kernel(e), k_conv.emit_conv_kernel(e)]
ka = k_ln.emit_ln_kernel(e, "lna_kernel", "A")
kb = k_ln.emit_ln_kernel(e, "lnb_kernel", "B")
kf = k_ln.emit_ln_kernel(e, "fin_kernel", "F")
f0, f1 = k_ffn.emit_ffn(e, loop=bool(P["loop"]), prof=bool(P["prof"]))
order = fr + [ka, f0, kb, f1, kf]
allk = list(order)
if P["extra"]:
    kernel_head(e, "nop_kernel"); e("s_endpgm")
    kn = dict(name="nop_kernel", grid=1, block=64, lds=0, desc=kernel_desc("nop_kernel", 8))
    order += [kn] * P["extra"]; allk.append(kn)
ref = open(OUT + ".ref").read().split("\n")
hdr = [l for l in ref if l.startswith(";") and "@launch" not in l and "Override" not in l and "grid=ceil" not in l]
txt = "\n".join(hdr) + "\n"
for k in order:
    txt += f"; @launch kernel={k['name']} grid=({k['grid']},1,1) block=({k['block']},1,1) lds={k['lds']}\n"
txt += '.amdgcn_target "amdgcn-amd-amdhsa--gfx950"\n.text\n' + e.text()
txt += '.section .rodata,"a"\n'
for k in allk: txt += ".p2align 6\n" + k["desc"]
open(P["out"], "w").write(txt)
print("written", P["out"], len(txt))
```

```python
S, D, F = 2048, 576, 4608
MiB = 1 << 20
WS_W   = 0
W_SPLIT = 995328
STAGE = 36864
WS_KVT = 16 * MiB
WS_YT  = 19 * MiB
WS_XN  = [22 * MiB, 25 * MiB]
WS_X   = [28 * MiB, 31 * MiB]
WS_YR  = 34 * MiB
WS_P   = [40 * MiB, 80 * MiB]
ACT = S * D * 2
PBYTES = 16 * ACT
KA = dict(q=0, k=8, v=16, sk=24, h=32, D=40, bx=48, wg=56, wu=64, wd=72, out=80, dbg=88, ws=96)

class Asm:
    def __init__(self):
        self.L = []
    def __call__(self, s):
        for l in s.split("\n"):
            l = l.strip()
            if l: self.L.append(l if l.endswith(":") or l.startswith(".") else "    " + l)
    def text(self): return "\n".join(self.L) + "\n"

def vr(a, n=None):
    return f"v{a}" if n is None or n == 1 else f"v[{a}:{a+n-1}]"
def ar(a, n=4): return f"a[{a}:{a+n-1}]"
def sr(a, n): return f"s[{a}:{a+n-1}]"

def kernel_head(e, name):
    e(f".globl {name}\n.p2align 8\n.type {name},@function\n{name}:")

def kernel_desc(name, vgpr, agpr=0, sgpr=96):
    acc = (vgpr + 3) // 4 * 4
    nfv = vgpr if agpr == 0 else acc + agpr
    return f""".amdhsa_kernel {name}
  .amdhsa_next_free_vgpr {nfv}
  .amdhsa_next_free_sgpr {sgpr}
  .amdhsa_accum_offset {acc}
  .amdhsa_group_segment_fixed_size 0
  .amdhsa_kernarg_size 104
  .amdhsa_user_sgpr_count 2
  .amdhsa_user_sgpr_kernarg_segment_ptr 1
  .amdhsa_system_sgpr_workgroup_id_x 1
.end_amdhsa_kernel
"""

def srd(e, d, ptr, off, size):
    if off == 0:
        e(f"s_mov_b32 s{d}, s{ptr}\ns_mov_b32 s{d+1}, s{ptr+1}")
    else:
        e(f"s_add_u32 s{d}, s{ptr}, {off}\ns_addc_u32 s{d+1}, s{ptr+1}, 0")
    e(f"s_mov_b32 s{d+2}, {size}\ns_mov_b32 s{d+3}, 0x20000")

def unpack_lo(e, d, s): e(f"v_lshlrev_b32 v{d}, 16, v{s}")
def unpack_hi(e, d, s): e(f"v_and_b32 v{d}, 0xffff0000, v{s}")

WS_DBG = 128 * MiB
def stamp(e, i, on):
    if on: e(f"s_memtime s[{60+4*i}:{61+4*i}]\ns_memrealtime s[{62+4*i}:{63+4*i}]")
def stamp_flush(e, n, on, slot, wsp=10, wave=28, stride=64):
    if not on: return
    e("s_waitcnt lgkmcnt(0)")
    srd(e, 56, wsp, WS_DBG + slot * 65536, 1024 * stride)
    e(f"s_lshl_b32 s54, s2, 2\ns_add_u32 s54, s54, s{wave}\ns_mul_i32 s54, s54, {stride}\nv_mov_b32 v1, s54")
    for i in range(n):
        e(f"v_mov_b32 v2, s{60+4*i}\nv_mov_b32 v3, s{62+4*i}\nbuffer_store_dwordx2 v[2:3], v1, s[56:59], 0 offen offset:{8*i}\ns_nop 1")

def code_prefetch(e, label, endlabel, nkb, vt, uniq):
    n = (nkb + 3) // 4
    e(f"""
    s_getpc_b64 s[98:99]
    L_pf_{uniq}:
    s_add_u32 s98, s98, {label}-L_pf_{uniq}
    s_addc_u32 s99, s99, 0
    v_and_b32 v{vt+3}, 63, v0
    v_lshlrev_b32 v{vt+3}, 6, v{vt+3}
    """)
    for i in range(n):
        e(f"""
        v_min_u32 v{vt}, {endlabel}-{label}-4, v{vt+3}
        v_mov_b32 v{vt+1}, s99
        v_add_co_u32 v{vt}, vcc, s98, v{vt}
        v_add_u32 v{vt+3}, 4096, v{vt+3}
        s_nop 0
        v_addc_co_u32 v{vt+1}, vcc, 0, v{vt+1}, vcc
        global_load_dword v{vt+2}, v[{vt}:{vt+1}], off
        """)
    return n
```

```python
from common import *

V_LA, V_LAN = 1, 2
V_GA = [3, 4, 5]
V_ST = 6
V_C2 = 7
V_T = 8
V_OUT = 16
ACC = 24
FB = 56
HB0 = 130
NV = 204
S_W, S_XN, S_P = 12, 16, 20
S_WV = 28
S_C1 = 29
S_DMA = 30
S_SLOT = 31
S_RD = 32
S_ST0, S_ST1 = 33, 34
S_IDX = 35
S_CNT = 36
S_LANE16 = None
V_L16 = 202
C1 = 0xc0135761
C2 = 0xbdd2d3c8
import struct
def f2u(x): return struct.unpack('<I', struct.pack('<f', x))[0]
LOG2E = 1.4426950408889634
K = 2 * 0.7978845608028654
C1 = f2u(-LOG2E * K); C2 = f2u(-LOG2E * K * 0.044715)

OPT = dict(nogelu=0, nodma=0, nobar=0, nostore=0, stf='sc1', nolds=0, noidx=0, spx=4, dsp=1, novm=0, dmaf='')
def acc1(par, mat, mt): return ACC + 16 * par + 4 * (2 * mat + mt)
def acc2(tl, mt): return ACC + 4 * (2 * tl + mt)
def mfma(D_, A, B, first): return f"v_mfma_f32_16x16x32_bf16 v[{D_}:{D_+3}], v[{A}:{A+3}], {B}, " + ("0" if first else f"v[{D_}:{D_+3}]")

def gelu_ops(par, hreg):
    ops = []
    els = [(mt, i) for mt in range(2) for i in range(4)]
    def G(mt, i): return acc1(par, 0, mt) + i
    def U(mt, i): return acc1(par, 1, mt) + i
    for mt in range(2):
        E = [(mt, i) for i in range(4)]
        for (m, i) in E: ops.append(f"v_mul_f32 v{V_T+4*m+i}, v{G(m,i)}, v{G(m,i)}")
        for (m, i) in E: ops.append(f"v_fma_f32 v{V_T+4*m+i}, v{V_T+4*m+i}, v{V_C2}, s{S_C1}")
        for (m, i) in E: ops.append(f"v_mul_f32 v{V_T+4*m+i}, v{V_T+4*m+i}, v{G(m,i)}")
        for (m, i) in E: ops.append(f"v_exp_f32 v{V_T+4*m+i}, v{V_T+4*m+i}")
        for (m, i) in E: ops.append(f"v_mul_f32 v{U(m,i)}, v{G(m,i)}, v{U(m,i)}")
        for (m, i) in E: ops.append(f"v_add_f32 v{V_T+4*m+i}, 1.0, v{V_T+4*m+i}")
        for (m, i) in E: ops.append(f"v_rcp_f32 v{V_T+4*m+i}, v{V_T+4*m+i}")
        for (m, i) in E: ops.append(f"v_mul_f32 v{U(m,i)}, v{U(m,i)}, v{V_T+4*m+i}")
    cv = []
    for mt in range(2):
        for h in range(2):
            cv.append(f"v_cvt_pk_bf16_f32 v{hreg(mt)+h}, v{U(mt,2*h)}, v{U(mt,2*h+1)}")
    return ops, cv

def dma_ops():
    L = []
    for i in range(9):
        if i % 4 == 0: L.append(f"s_add_u32 m0, s{S_SLOT}, {(i//4)*4096}")
        L.append(f"buffer_load_dwordx4 v{V_GA[i//4]}, s[{S_W}:{S_W+3}], s{S_DMA} offen offset:{(i%4)*1024} {OPT['dmaf']} lds")
    return L

def slot_update():
    return [f"s_add_u32 s{S_DMA}, s{S_DMA}, {STAGE}",
            f"s_add_u32 s{S_SLOT}, s{S_SLOT}, {STAGE}",
            f"s_cmp_ge_u32 s{S_SLOT}, {4*STAGE}",
            f"s_cselect_b32 s37, {4*STAGE}, 0",
            f"s_sub_u32 s{S_SLOT}, s{S_SLOT}, s37"]
def rd_update():
    return [f"s_add_u32 s{S_RD}, s{S_RD}, {STAGE}",
            f"s_cmp_eq_u32 s{S_RD}, {4*STAGE}",
            f"s_cselect_b32 s{S_RD}, 0, s{S_RD}"]

def keep(x):
    if OPT['nodma'] and x.endswith(" lds"): return False
    if OPT['nobar'] and x == "s_barrier": return False
    if OPT['nostore'] and x.startswith("buffer_store"): return False
    if OPT['nolds'] and x.startswith("ds_read"): return False
    if OPT['nogelu'] and x.startswith("v_") and not x.startswith("v_add_u32"): return False
    if OPT['noidx'] and x.startswith("s_set_gpr"): return False
    return True
def emit_sched(e, mf, pre, fill):
    for i, m in enumerate(mf):
        for x in pre.get(i, []):
            if OPT['novm'] and "vmcnt" in x: x = "s_waitcnt lgkmcnt(0)"
            if keep(x): e(x)
        e(m)
        for x in fill.get(i, []):
            if keep(x): e(x)

def add(d, i, x): d.setdefault(i, []).append(x)

def p1_stage(e, par, hreg, idx, la, lan, vmn, do_gelu=True, tail=(), extra={}):
    mf = []; pre = {}; fill = {}
    for i in range(72):
        g, r = divmod(i, 12); mt, k = divmod(r, 6)
        mat = g & 1; kap = 6 * (g >> 1) + k
        A = FB + 36 * (g & 1) + 4 * k
        mf.append(mfma(acc1(par, mat, mt), A, ar((mt * 18 + kap) * 4), kap == 0))
        if r == 0:
            if g == 5:
                add(pre, i, f"s_waitcnt vmcnt({vmn}) lgkmcnt(0)"); add(pre, i, "s_barrier")
            else: add(pre, i, "s_waitcnt lgkmcnt(0)")
        if r < 6:
            d = FB + 36 * ((g + 1) & 1) + 4 * r
            if g < 5: add(fill, i, f"ds_read_b128 v[{d}:{d+3}], v{la} offset:{((g+1)*6+r)*1024}")
            else: add(fill, i, f"ds_read_b128 v[{d}:{d+3}], v{lan} offset:{r*1024}")
    if OPT['dsp']:
        pos = [12 * g + r for g in range(5) for r in (7, 10)][:9]
        n = 0
        for x in dma_ops():
            if x.startswith("s_add"): add(fill, pos[n] - 1, x)
            else: add(fill, pos[n], x); n += 1
        for s, x in zip([8, 20, 21], rd_update()): add(fill, s, x)
        for s, x in zip([56, 57, 58, 59, 65], slot_update()): add(fill, s, x)
    else:
        other = dma_ops() + slot_update() + rd_update()
        free = [12 * g + r for g in range(5) for r in range(6, 11)]
        assert len(other) <= len(free)
        for s, x in zip(free, other): add(fill, s, x)
    ops, cv = gelu_ops(1 - par, hreg)
    valu = list(ops) if do_gelu else []
    vs = 0
    for x in valu:
        add(fill, vs, x); vs += 1
    add(fill, 64, f"v_add_u32 v{la}, s{S_RD}, v{V_L16}")
    if do_gelu:
        if idx:
            add(fill, 66, f"s_set_gpr_idx_on s{S_IDX}, gpr_idx(DST)")
            for x in cv: add(fill, 66, x)
            add(fill, 66, "s_set_gpr_idx_off")
            add(fill, 67, f"s_add_u32 s{S_IDX}, s{S_IDX}, 2")
        else:
            for n, x in enumerate(cv): add(fill, 66 + n, x)
    for n, x in enumerate(tail): add(fill, 70 + n, x)
    for sl, xs in extra.items():
        for x in xs: add(fill, sl, x)
    emit_sched(e, mf, pre, fill)

def p2_stage(e, la, lan, vmn, off01, off23, first=False, tail=()):
    mf = []; pre = {}; fill = {}
    for i in range(72):
        tl, r = divmod(i, 18); mt, k2 = divmod(r, 9)
        A = FB + 36 * (tl & 1) + 4 * k2
        B = HB0 + 36 * mt + 4 * k2
        mf.append(mfma(acc2(tl, mt), A, f"v[{B}:{B+3}]", k2 == 0))
        if r == 0:
            if tl == 3:
                add(pre, i, f"s_waitcnt vmcnt({vmn}) lgkmcnt(0)"); add(pre, i, "s_barrier")
            else: add(pre, i, "s_waitcnt lgkmcnt(0)")
        if r < 9:
            d = FB + 36 * ((tl + 1) & 1) + 4 * r
            if tl < 3: add(fill, i, f"ds_read_b128 v[{d}:{d+3}], v{la} offset:{((tl+1)*9+r)*1024}")
            else: add(fill, i, f"ds_read_b128 v[{d}:{d+3}], v{lan} offset:{r*1024}")
    def outp(t0, off, s0):
        n = s0
        for x in out_ops(t0, off):
            add(fill, n, x)
            if not x.startswith("buffer"): n += 1
    if not first: outp(2, off23, 9)
    outp(0, off01, 45)
    if OPT['dsp']:
        pos = [2, 8, 19, 25, 30, 35, 38, 43, 51]
        n = 0
        for x in dma_ops():
            if x.startswith("s_add"): add(fill, pos[n] - 1, x)
            else: add(fill, pos[n], x); n += 1
        for n, x in enumerate(slot_update() + rd_update()): add(fill, 54 + n, x)
    else:
        n = 26
        for x in dma_ops():
            add(fill, n, x)
            if x.startswith("buffer"): n += 1
        for n, x in enumerate(slot_update() + rd_update()): add(fill, 36 + n, x)
    add(fill, 63, f"v_add_u32 v{la}, s{S_RD}, v{V_L16}")
    for n, x in enumerate(tail): add(fill, 64 + n, x)
    emit_sched(e, mf, pre, fill)

def out_ops(t0, off):
    L = []
    for mt in range(2):
        O = V_OUT + 4 * mt
        for h in range(2):
            a = acc2(t0 + h, mt)
            L.append(f"v_cvt_pk_bf16_f32 v{O+2*h}, v{a}, v{a+1}")
            L.append(f"v_cvt_pk_bf16_f32 v{O+2*h+1}, v{a+2}, v{a+3}")
        L.append(f"buffer_store_dwordx4 v[{O}:{O+3}], v{V_ST}, s[{S_P}:{S_P+3}], s{S_ST0+mt} offen offset:{off} {OPT['stf']}".rstrip())
    return L

def emit_ffn(e, loop=True, prof=False):
    ks = []
    for lay in range(2):
        name = f"ffn{lay}_kernel"
        kernel_head(e, name)
        e(f"s_mov_b32 s38, {WS_XN[lay]}\ns_mov_b32 s39, {WS_P[lay]}")
        if lay == 0: e("s_branch L_ffn_body")
        ks.append(dict(name=name, grid=256, block=256, lds=4 * STAGE, desc=kernel_desc(name, NV, 144)))
    e(f"""
    L_ffn_body:
    s_cmp_ge_u32 s2, 256
    s_cbranch_scc1 L_ffn_end
    s_load_dwordx2 s[10:11], s[0:1], {KA['ws']}
    """)
    stamp(e, 0, prof)
    e(f"""
    v_lshrrev_b32 v1, 6, v0
    v_and_b32 v2, 63, v0
    v_lshlrev_b32 v{V_L16}, 4, v2
    v_readfirstlane_b32 s{S_WV}, v1
    """)
    lg = OPT['spx'].bit_length() - 1
    e(f"""
    s_bfe_u32 s4, s2, {hex(((4-lg) << 16) if lg >= 1 else 0)}
    s_and_b32 s4, s4, 7
    s_lshl_b32 s4, s4, {lg}
    s_bfe_u32 s5, s2, {hex((lg << 16) | 3)}
    s_add_u32 s4, s4, s5
    s_lshr_b32 s5, s2, {3 + lg}
    s_lshl_b32 s5, s5, {lg - 1}
    s_and_b32 s6, s2, 7
    s_lshr_b32 s6, s6, {4 - lg}
    s_add_u32 s5, s5, s6
    s_mul_i32 s6, s4, {W_SPLIT}
    s_mul_i32 s7, s{S_WV}, 9216
    v_add_u32 v{V_GA[0]}, s7, v{V_L16}
    v_add_u32 v{V_GA[1]}, 4096, v{V_GA[0]}
    v_add_u32 v{V_GA[2]}, 8192, v{V_GA[0]}
    s_mov_b32 s{S_DMA}, 0
    s_mov_b32 s{S_SLOT}, s7
    s_waitcnt lgkmcnt(0)
    s_add_u32 s{S_W}, s10, s6
    s_addc_u32 s{S_W+1}, s11, 0
    s_mov_b32 s{S_W+2}, {W_SPLIT}
    s_mov_b32 s{S_W+3}, 0x20000
    s_add_u32 s{S_XN}, s10, s38
    s_addc_u32 s{S_XN+1}, s11, 0
    s_mov_b32 s{S_XN+2}, {ACT}
    s_mov_b32 s{S_XN+3}, 0x20000
    """)
    def dma_stage():
        for x in dma_ops():
            e(x)
            if x.startswith("s_add"): e("s_nop 0")
        e(f"s_add_u32 s{S_DMA}, s{S_DMA}, {STAGE}\ns_add_u32 s{S_SLOT}, s{S_SLOT}, {STAGE}")
    dma_stage()
    e(f"""
    s_lshl_b32 s8, s5, 2
    s_add_u32 s8, s8, s{S_WV}
    s_mul_i32 s9, s8, {2*18432}
    """)
    for n in range(36):
        e(f"buffer_load_dwordx4 {ar(4*n)}, v{V_L16}, s[{S_XN}:{S_XN+3}], s9 offen offset:{(n%4)*1024}")
        if n % 4 == 3 and n < 35: e("s_add_u32 s9, s9, 4096")
    dma_stage(); dma_stage()
    e(f"""
    s_add_u32 s{S_P}, s10, s39
    s_addc_u32 s{S_P+1}, s11, 0
    s_mov_b32 s{S_P+2}, {PBYTES}
    s_mov_b32 s{S_P+3}, 0x20000
    s_mul_i32 s{S_ST0}, s8, {4*147456}
    s_mul_i32 s9, s4, 9216
    s_add_u32 s{S_ST0}, s{S_ST0}, s9
    s_add_u32 s{S_ST1}, s{S_ST0}, {2*147456}
    s_mov_b32 s9, 147456
    v_bfe_u32 v8, v2, 3, 1
    v_mul_lo_u32 v{V_ST}, v8, s9
    v_bfe_u32 v8, v2, 1, 2
    v_mul_u32_u24 v8, 2304, v8
    v_add_u32 v{V_ST}, v{V_ST}, v8
    v_and_b32 v8, 1, v2
    v_lshl_add_u32 v{V_ST}, v8, 4, v{V_ST}
    v_lshrrev_b32 v8, 4, v2
    v_lshl_add_u32 v{V_ST}, v8, 5, v{V_ST}
    v_mov_b32 v{V_C2}, {hex(C2)}
    s_mov_b32 s{S_C1}, {hex(C1)}
    v_mov_b32 v{V_LA}, v{V_L16}
    v_add_u32 v{V_LAN}, {STAGE}, v{V_L16}
    s_mov_b32 s{S_RD}, {STAGE}
    s_mov_b32 s{S_IDX}, 0
    s_mov_b32 s{S_CNT}, 0
    s_waitcnt vmcnt(18)
    s_barrier
    """)
    stamp(e, 1, prof)
    for r in range(6): e(f"ds_read_b128 v[{FB+4*r}:{FB+4*r+3}], v{V_LA} offset:{r*1024}")
    R = [V_LA, V_LAN]
    if loop:
        e(".p2align 6\nL_ffn_p1:")
        hreg = lambda mt: HB0 - 2 + 36 * mt
        p1_stage(e, 0, hreg, True, R[0], R[1], 18)
        p1_stage(e, 1, hreg, True, R[1], R[0], 18, tail=[f"s_add_u32 s{S_CNT}, s{S_CNT}, 1", f"s_cmp_lt_u32 s{S_CNT}, 9"])
        e("s_cbranch_scc1 L_ffn_p1")
    else:
        for c in range(18):
            p1_stage(e, c & 1, lambda mt: HB0 + 36 * mt + 2 * (c - 1), False, R[c & 1], R[1 - (c & 1)], 18, do_gelu=(c > 0))
    stamp(e, 2, prof)
    for r in range(6, 9): e(f"ds_read_b128 v[{FB+4*r}:{FB+4*r+3}], v{R[0]} offset:{r*1024}")
    ops, cv = gelu_ops(1, lambda mt: HB0 + 36 * mt + 34)
    for x in ops + cv: e(x)
    e("s_nop 1")
    stamp(e, 3, prof)
    if loop:
        raise_first = True
        p2_stage(e, R[0], R[1], 20, 0, 0, first=True)
        e(f"s_mov_b32 s{S_CNT}, 0")
        e(".p2align 6\nL_ffn_p2:")
        p2_stage(e, R[1], R[0], 24, 256, 128)
        p2_stage(e, R[0], R[1], (27 if OPT['dsp'] else 28), 512, 384, tail=[f"s_add_u32 s{S_ST0}, s{S_ST0}, 512", f"s_add_u32 s{S_ST1}, s{S_ST1}, 512",
                 f"s_add_u32 s{S_CNT}, s{S_CNT}, 1", f"s_cmp_lt_u32 s{S_CNT}, 4"])
        e("s_cbranch_scc1 L_ffn_p2")
        last = 128
    else:
        for st in range(9):
            vmn = [20, 24][st] if st < 2 else (27 if OPT['dsp'] else 28)
            p2_stage(e, R[st & 1], R[1 - (st & 1)], vmn, 256 * st, 256 * st - 128, first=(st == 0))
        last = 256 * 8 + 128
    e("s_nop 7")
    for x in out_ops(2, last): e(x)
    stamp(e, 4, prof)
    if prof:
        e("s_waitcnt vmcnt(0)")
        stamp(e, 5, prof)
        e(f"s_cmp_eq_u32 s38, {WS_XN[0]}\ns_cselect_b32 s53, 0, 65536\ns_add_u32 s10, s10, s53\ns_addc_u32 s11, s11, 0")
        stamp_flush(e, 6, prof, 0)
    e("L_ffn_end:\ns_endpgm")
    return ks
```

```python
from common import *

N_CONV = 144
N_SH = 112
CONV_LDS_W = 21760
UB, HB, HSTR = 0, 5120, 4160
NT_W1 = 1296
NT_WD = 648
OPT = dict(ystf="", wstf="", flagws=0, pf=0, late=1, nowd=0, nosh=0, pq=1, pw=1, pall=0)
WS_CNT = 120 * MiB + 65536
WS_FLAG = 120 * MiB
FLAG_STRIDE = 256
SPIN_MAX = 200000

def wd_addr_setup(e, vl, vs, vkk, t1, t2):
    e(f"""
    v_and_b32 v{t1}, 7, v0
    v_bfe_u32 v{t2}, v0, 3, 2
    v_bfe_u32 v{vkk}, v0, 5, 1
    v_lshlrev_b32 v{vl}, 5, v{t2}
    v_lshl_add_u32 v{vl}, v{vkk}, 1, v{vl}
    v_mul_u32_u24 v{vl}, 1152, v{vl}
    v_lshl_add_u32 v{vl}, v{t1}, 4, v{vl}
    v_lshrrev_b32 v{vs}, 2, v{t1}
    v_mul_u32_u24 v{vs}, {18*1024}, v{vs}
    v_lshl_add_u32 v{vs}, v{t2}, 8, v{vs}
    v_and_b32 v{t1}, 3, v{t1}
    v_lshl_add_u32 v{vs}, v{t1}, 6, v{vs}
    """)

def wd_loads(e, sT, stp, sog, R, vl, srd_):
    e(f"""
    s_mul_i32 s{stp}, s{sT}, 7282
    s_lshr_b32 s{stp}, s{stp}, 16
    s_mul_i32 s35, s{stp}, 9
    s_sub_u32 s{sog}, s{sT}, s35
    s_lshr_b32 s34, s{stp}, 1
    s_lshl_b32 s34, s34, 7
    s_and_b32 s35, s{stp}, 1
    s_lshl_b32 s35, s35, 2
    s_add_u32 s34, s34, s35
    s_mul_i32 s34, s34, 1152
    s_lshl_b32 s35, s{sog}, 7
    s_add_u32 s34, s34, s35
    """)
    for r in range(4):
        e(f"buffer_load_dwordx4 v[{R+4*r}:{R+4*r+3}], v{vl}, s[{srd_}:{srd_+3}], s34 offen")
        e(f"buffer_load_dwordx4 v[{R+16+4*r}:{R+16+4*r+3}], v{vl}, s[{srd_}:{srd_+3}], s34 offen offset:1152")
        if r < 3: e("s_add_u32 s34, s34, 9216")

def wd_stores(e, stp, sog, R, vs, vkk, va, srd_, T0, wait):
    for kk in range(2):
        e(f"""
        s_lshl_b32 s35, s{stp}, 1
        s_add_u32 s35, s35, {kk}
        s_mul_i32 s36, s35, 7282
        s_lshr_b32 s36, s36, 16
        s_mul_i32 s36, s36, {W_SPLIT - 9 * 1024}
        s_lshl_b32 s35, s35, 10
        s_add_u32 s{37+kk}, s35, s36
        """)
    e(f"""
    s_sub_u32 s38, s38, s37
    v_mul_lo_u32 v{va}, v{vkk}, s38
    v_add_u32 v{va}, v{va}, v{vs}
    s_mul_i32 s35, s{sog}, {36 * 1024}
    s_add_u32 s37, s37, s35
    s_add_u32 s37, s37, {18 * STAGE}
    s_add_u32 s38, s37, {9 * 1024}
    """)
    if wait is not None: e(f"s_waitcnt vmcnt({wait})")
    def store(ec, reg):
        e(f"buffer_store_dwordx4 v[{reg}:{reg+3}], v{va}, s[{srd_}:{srd_+3}], s{37 + (ec >> 2)} offen offset:{(ec & 3) * 16} {OPT['wstf']}")
    transpose_store(e, R, store, T0)

def emit_conv(e, prof):
    e(f"""
    s_load_dwordx4 s[36:39], s[0:1], {KA['k']}
    s_load_dwordx2 s[8:9], s[0:1], {KA['sk']}
    s_load_dwordx4 s[4:7], s[0:1], {KA['h']}
    s_load_dwordx2 s[10:11], s[0:1], {KA['ws']}
    s_load_dwordx2 s[52:53], s[0:1], {KA['wd']}
    s_load_dwordx2 s[96:97], s[0:1], {KA['dbg']}
    """)
    stamp(e, 0, prof)
    e(f"""
    v_lshrrev_b32 v1, 6, v0
    v_and_b32 v2, 63, v0
    v_and_b32 v3, 15, v0
    v_readfirstlane_b32 s28, v1
    v_bfe_u32 v4, v0, 4, 2
    s_lshl_b32 s29, s3, 2
    v_lshlrev_b32 v5, 4, v2
    s_add_u32 s29, s29, s28
    s_mul_i32 s30, s28, {CONV_LDS_W}
    s_lshl_b32 s31, s29, 12
    s_lshr_b32 s32, s29, 6
    s_and_b32 s33, s29, 63
    s_mul_i32 s34, s33, {32*1152}
    s_lshl_b32 s35, s32, 7
    s_add_u32 s34, s34, s35
    v_mul_u32_u24 v6, 9216, v4
    v_lshl_add_u32 v6, v3, 3, v6
    v_add_u32 v6, s34, v6
    s_lshl_b32 s34, s32, 9
    v_lshl_add_u32 v7, v3, 5, s34
    v_subrev_u32 v10, 3456, v6
    v_subrev_u32 v11, 2304, v6
    v_subrev_u32 v12, 1152, v6
    v_add_u32 v13, 4608, v6
    s_waitcnt lgkmcnt(0)
    """)
    stamp(e, 1, prof)
    srd(e, 16, 36, 0, ACT); srd(e, 20, 38, 0, ACT); srd(e, 24, 8, 0, D * 8)
    KR, VR, WL = 72, 96, 64
    e(f"buffer_load_dwordx4 v[{WL}:{WL+3}], v7, s[24:27], 0 offen")
    e(f"buffer_load_dwordx4 v[{WL+4}:{WL+7}], v7, s[24:27], 0 offen offset:16")
    for r in range(11):
        if r < 3: e(f"buffer_load_dwordx2 v[{KR+2*r}:{KR+2*r+1}], v{10+r}, s[16:19], 0 offen")
        else:
            rr = r - 3
            e(f"buffer_load_dwordx2 v[{KR+2*r}:{KR+2*r+1}], v{6 if rr < 4 else 13}, s[16:19], 0 offen offset:{(rr%4)*1152}")
            e(f"buffer_load_dwordx2 v[{VR+2*rr}:{VR+2*rr+1}], v{6 if rr < 4 else 13}, s[20:23], 0 offen offset:{(rr%4)*1152}")
    HW = 192
    WD = 224
    def h_loads():
        e("""
        s_add_u32 s12, s4, s31
        s_addc_u32 s13, s5, 0
        s_mov_b32 s14, 4096
        s_mov_b32 s15, 0x20000
        """)
        srd(e, 20, 6, 0, D * 2)
        HW = 192
        for r in range(4):
            e(f"buffer_load_dwordx4 v[{HW+6*r}:{HW+3+6*r}], v5, s[12:15], 0 offen offset:{1024*r}")
            e(f"buffer_load_dwordx2 v[{HW+4+6*r}:{HW+5+6*r}], v5, s[12:15], 0 offen offset:{1024*r+16}")
        e(f"""
        v_subrev_u32 v7, 48, v5
        s_lshl_b32 s34, s29, 1
        v_mov_b32 v9, s34
        buffer_load_dwordx2 v[{HW+28}:{HW+29}], v7, s[12:15], 0 offen
        buffer_load_ushort v8, v9, s[20:23], 0 offen
        """)
    def w_loads():
        WD = 224
        wd_addr_setup(e, 10, 15, 14, 11, 12)
        srd(e, 20, 52, 0, D * F * 2)
        wd_loads(e, 29, 42, 43, WD, 10, 20)
    if not OPT['late']: h_loads(); w_loads()
    NA = 0 if OPT['late'] else 18
    srd(e, 48, 10, WS_YT, ACT); srd(e, 16, 10, WS_KVT, ACT); srd(e, 24, 10, WS_W, 16 * W_SPLIT)
    if OPT['flagws']: srd(e, 92, 10, WS_FLAG, 4096)
    else: srd(e, 92, 96, 0, 256)
    e("s_mov_b32 s40, 0x05040100\ns_mov_b32 s41, 0x07060302")
    e(f"""
    s_lshl_b32 s34, s32, 18
    s_lshl_b32 s35, s33, 6
    s_add_u32 s44, s34, s35
    v_lshlrev_b32 v13, 14, v3
    v_lshl_add_u32 v13, v4, 4, v13
    """)
    WP = 156
    KF = 112
    RS = 16
    TT = 172
    def unk(r):
        for p in range(2):
            unpack_lo(e, KF + 4*r + 2*p, KR + 2*r + p); unpack_hi(e, KF + 4*r + 2*p + 1, KR + 2*r + p)
    stamp(e, 2, prof)
    e(f"s_waitcnt vmcnt({NA + 16})")
    stamp(e, 3, prof)
    for p in range(2):
        for t in range(4):
            for c in range(2):
                src = WL + 2 * (2 * p + c) + (t >> 1)
                (unpack_lo if t % 2 == 0 else unpack_hi)(e, WP + 8 * p + 2 * t + c, src)
    for r in range(3): unk(r)
    for r in range(8):
        e(f"s_waitcnt vmcnt({NA + 16 - 2*(r+1)})")
        if OPT['late'] and r == 2: h_loads(); NA += 10
        unk(r + 3)
        for p in range(2):
            for t in range(4):
                a = TT + 10*p + 2*t; k = KF + 4*(r+t) + 2*p; w = WP + 8*p + 2*(3-t)
                e(f"v_pk_mul_f32 v[{a}:{a+1}], v[{k}:{k+1}], v[{w}:{w+1}]")
        for t in range(4):
            for p in range(2):
                a = TT + 10*p + 2*t
                e(f"v_cvt_pk_bf16_f32 v{a}, v{a}, v{a+1}")
        for t in range(4):
            for p in range(2):
                a = TT + 10*p + 2*t
                unpack_hi(e, a + 1, a); unpack_lo(e, a, a)
        for p in range(2):
            a = TT + 10*p + 8
            unpack_lo(e, a, VR + 2*r + p); unpack_hi(e, a + 1, VR + 2*r + p)
        for t in range(1, 4):
            for p in range(2):
                a = TT + 10*p
                e(f"v_pk_add_f32 v[{a}:{a+1}], v[{a}:{a+1}], v[{a+2*t}:{a+2*t+1}]")
            for p in range(2):
                a = TT + 10*p
                e(f"v_cvt_pk_bf16_f32 v{a}, v{a}, v{a+1}")
            for p in range(2):
                a = TT + 10*p
                unpack_hi(e, a + 1, a); unpack_lo(e, a, a)
        for p in range(2):
            a = TT + 10*p; d = RS + 4*r + 2*p
            e(f"v_pk_mul_f32 v[{d}:{d+1}], v[{a}:{a+1}], v[{a+8}:{a+9}]")
    for c in range(4):
        for p in range(4):
            e(f"v_cvt_pk_bf16_f32 v{48+4*c+p}, v{RS+4*(7-2*p)+c}, v{RS+4*(6-2*p)+c}")
        e(f"buffer_store_dwordx4 v[{48+4*c}:{48+4*c+3}], v13, s[16:19], s44 offen sc1")
        if c < 3: e("s_add_u32 s44, s44, 4096")
    stamp(e, 4, prof)
    if OPT['late'] and not OPT['nowd']: w_loads()
    e(f"""
    v_mov_b32 v{HW+24}, 0
    v_mov_b32 v{HW+25}, 0
    v_mov_b32 v{HW+26}, 0
    v_mov_b32 v{HW+27}, 0
    v_mul_u32_u24 v9, 1280, v4
    v_lshl_add_u32 v9, v3, 4, v9
    v_add_u32 v9, s30, v9
    ds_write_b128 v9, v[{HW+24}:{HW+27}] offset:{UB}
    v_add_u32 v10, s30, v5
    s_waitcnt vmcnt({4 if OPT['nowd'] else 12})
    """)
    T = 72
    def copies(W, addr, off):
        e(f"ds_write_b128 v{addr}, v[{W}:{W+3}] offset:{HB + off}")
        for i in range(4): e(f"v_alignbit_b32 v{T+i}, v{W+i+1}, v{W+i}, 16")
        for i in range(4): e(f"v_mov_b32 v{T+4+i}, v{W+i+1}")
        for i in range(4): e(f"v_alignbit_b32 v{T+8+i}, v{W+i+2}, v{W+i+1}, 16")
        for a in range(1, 4):
            e(f"ds_write_b128 v{addr}, v[{T+4*(a-1)}:{T+4*(a-1)+3}] offset:{HB + a*HSTR + off}")
    for r in range(2):
        copies(HW + 6*r, 10, 1024*r + 64)
        T += 12
    fs = FLAG_STRIDE if OPT['flagws'] else 4
    e(f"""
    s_mul_i32 s45, s32, {fs}
    v_mov_b32 v11, 1
    v_mov_b32 v12, s45
    s_waitcnt vmcnt({8 if OPT['late'] and not OPT['nowd'] else 0})
    s_barrier
    s_cmp_lg_u32 s28, 0
    s_cbranch_scc1 L_conv_nosig
    s_mov_b64 exec, 1
    buffer_atomic_add v11, v12, s[92:95], 0 offen sc1
    s_mov_b64 exec, -1
    L_conv_nosig:
    """)
    stamp(e, 5, prof)
    for r in range(2, 4):
        copies(HW + 6*r, 10, 1024*r + 64)
        T += 12
    e("s_mov_b64 exec, 15")
    copies(HW + 24, 10, 0)
    e("s_mov_b64 exec, -1")
    if not OPT['nowd']: wd_stores(e, 42, 43, WD, 15, 14, 7, 24, 16, 0)
    e(f"""
    v_lshlrev_b32 v8, 16, v8
    v_add_u32 v11, 1, v3
    v_and_b32 v13, 3, v11
    v_sub_u32 v11, v11, v13
    v_lshlrev_b32 v14, 3, v4
    v_sub_u32 v11, v11, v14
    v_lshlrev_b32 v11, 1, v11
    v_mul_u32_u24 v13, {HSTR}, v13
    v_add3_u32 v11, v11, v13, s30
    v_add_u32 v11, {HB + 48}, v11
    v_and_b32 v14, 3, v2
    v_mul_u32_u24 v14, 1280, v14
    v_lshrrev_b32 v15, 2, v2
    v_lshl_add_u32 v14, v15, 4, v14
    v_add_u32 v14, s30, v14
    """)
    for i in range(32): e(f"v_mov_b32 v{112+i}, 0")
    e(f"""
    s_cmp_lg_u32 s28, 0
    s_cbranch_scc1 L_conv_polled
    s_mov_b32 s46, 0
    L_conv_poll:
    buffer_load_dword v13, v12, s[92:95], 0 offen sc1
    s_add_u32 s46, s46, 1
    s_waitcnt vmcnt(0)
    v_readfirstlane_b32 s47, v13
    s_cmp_ge_u32 s47, 16
    s_cbranch_scc1 L_conv_polled
    s_cmp_lt_u32 s46, {SPIN_MAX}
    s_cbranch_scc1 L_conv_poll
    L_conv_polled:
    s_barrier
    """)
    for i in range(4): e(f"buffer_load_dwordx4 v[{16+4*i}:{19+4*i}], v5, s[16:19], s31 offen offset:{1024*i} sc1")
    e("v_add_u32 v12, 240, v9")
    for i in range(4):
        e(f"s_waitcnt vmcnt({3-i})")
        e(f"ds_write_b128 v14, v[{16+4*i}:{19+4*i}] offset:{UB + 256 + 256*i}")
    FB = [16, 64]
    ACC = 112
    e("s_waitcnt lgkmcnt(0)")
    stamp(e, 6, prof)
    def acc(t, mt): return ACC + 4 * (2 * t + mt)
    def reads(buf, jo):
        L = []
        for b in range(4):
            r = FB[buf] + 32 + 4 * b
            L.append(f"ds_read_b128 v[{r}:{r+3}], v12 offset:{UB + 16 - 16*jo + 256*b}")
        for a in range(4):
            for mt in range(2):
                r = FB[buf] + 4 * (2 * a + mt)
                o = 64 * jo + 1024 * a + 32 * mt
                L.append(f"ds_read_b64 v[{r}:{r+1}], v11 offset:{o}")
                L.append(f"ds_read_b64 v[{r+2}:{r+3}], v11 offset:{o+8}")
        return L
    def step(buf, rd, extra=()):
        mf = [(t, a, mt) for a in range(4) for mt in range(2) for t in range(a, 4)]
        rd = list(rd); extra = list(extra)
        for i, (t, a, mt) in enumerate(mf):
            A = FB[buf] + 4 * (2 * a + mt); B = FB[buf] + 32 + 4 * (t - a); C = acc(t, mt)
            if i == 0: e("s_waitcnt lgkmcnt(0)")
            e(f"v_mfma_f32_16x16x32_bf16 v[{C}:{C+3}], v[{A}:{A+3}], v[{B}:{B+3}], v[{C}:{C+3}]")
            for _ in range(2):
                if rd: e(rd.pop(0))
            if not rd and extra: e(extra.pop(0))
        for x in extra: e(x)
    for r in reads(0, 0): e(r)
    e("s_mov_b32 s33, 0")
    e("L_conv_loop:")
    step(0, reads(1, 1), [f"v_add_u32 v11, 128, v11", "v_subrev_u32 v12, 32, v12"])
    step(1, reads(0, 0), ["s_add_u32 s33, s33, 1", "s_cmp_lt_u32 s33, 8"])
    e("s_cbranch_scc1 L_conv_loop")
    e(f"""
    s_waitcnt lgkmcnt(0)
    v_lshrrev_b32 v13, 1, v4
    v_mul_u32_u24 v13, 1280, v13
    v_lshl_add_u32 v13, v3, 4, v13
    v_and_b32 v14, 1, v4
    v_xor_b32 v14, 1, v14
    v_lshl_add_u32 v13, v14, 3, v13
    v_add_u32 v13, s30, v13
    """)
    U = 16
    for t in range(4):
        for mt in range(2):
            r = U + 2 * (2 * t + mt)
            e(f"ds_read_b64 v[{r}:{r+1}], v13 offset:{UB + 256 + mt*2560 + t*256}")
    e(f"""
    v_and_b32 v14, 1, v4
    v_lshrrev_b32 v15, 1, v4
    v_lshl_add_u32 v14, v14, 1, v15
    v_lshl_add_u32 v14, v3, 2, v14
    v_mul_u32_u24 v14, 9216, v14
    s_lshl_b32 s34, s29, 4
    v_mov_b32 v9, v8
    s_waitcnt lgkmcnt(0)
    """)
    T = 40
    for t in range(4):
        O = 64 + 4 * t
        for mt in range(2):
            r = U + 2 * (2 * t + mt); C = acc(t, mt)
            unpack_hi(e, T, r + 1); unpack_lo(e, T + 1, r + 1); unpack_hi(e, T + 2, r); unpack_lo(e, T + 3, r)
            e(f"v_cvt_pk_bf16_f32 v{T+6}, v{C}, v{C+1}")
            e(f"v_cvt_pk_bf16_f32 v{T+7}, v{C+2}, v{C+3}")
            for i in range(0, 4, 2): e(f"v_pk_mul_f32 v[{T+i}:{T+i+1}], v[{T+i}:{T+i+1}], v[8:9]")
            unpack_lo(e, T + 8, T + 6); unpack_hi(e, T + 9, T + 6); unpack_lo(e, T + 10, T + 7); unpack_hi(e, T + 11, T + 7)
            e(f"v_cvt_pk_bf16_f32 v{T+4}, v{T}, v{T+1}")
            e(f"v_cvt_pk_bf16_f32 v{T+5}, v{T+2}, v{T+3}")
            unpack_lo(e, T, T + 4); unpack_hi(e, T + 1, T + 4); unpack_lo(e, T + 2, T + 5); unpack_hi(e, T + 3, T + 5)
            for i in range(0, 4, 2): e(f"v_pk_add_f32 v[{T+i}:{T+i+1}], v[{T+i}:{T+i+1}], v[{T+8+i}:{T+9+i}]")
            e(f"v_cvt_pk_bf16_f32 v{O+2*mt}, v{T}, v{T+1}")
            e(f"v_cvt_pk_bf16_f32 v{O+2*mt+1}, v{T+2}, v{T+3}")
        e("s_nop 1")
        e(f"v_permlane16_swap_b32 v{O}, v{O+2}")
        e(f"v_permlane16_swap_b32 v{O+1}, v{O+3}")
        e(f"buffer_store_dwordx4 v[{O}:{O+3}], v14, s[48:51], s34 offen {OPT['ystf']}")
        if t < 3: e(f"s_add_u32 s34, s34, {64*9216}")
    if prof:
        e("s_waitcnt vmcnt(0)")
        stamp(e, 7, prof)
        stamp_flush(e, 8, prof, 2)
    e("s_endpgm")

def transpose_store(e, R, store, T0=16):
    for dw in range(4):
        T = T0 + 8 * (dw & 1)
        for h in range(2):
            for p in range(4):
                e(f"v_perm_b32 v{T+4*h+p}, v{R+4*(2*p+1)+dw}, v{R+4*(2*p)+dw}, s{40+h}")
        for h in range(2):
            store(2 * dw + h, T + 4 * h)

def emit_shuffle(e, prof):
    e(f"""
    s_load_dwordx4 s[4:7], s[0:1], {KA['wg']}
    s_load_dwordx2 s[8:9], s[0:1], {KA['wd']}
    s_load_dwordx2 s[10:11], s[0:1], {KA['ws']}
    """)
    stamp(e, 0, prof)
    if OPT['pf']: code_prefetch(e, "L_front_conv", "L_text_end", OPT['pf'], 12, "sh")
    e(f"""
    v_lshrrev_b32 v1, 6, v0
    v_and_b32 v2, 15, v0
    v_bfe_u32 v3, v0, 4, 2
    v_readfirstlane_b32 s28, v1
    s_lshl_b32 s29, s3, 2
    s_mov_b32 s40, 0x05040100
    s_mov_b32 s41, 0x07060302
    s_add_u32 s29, s29, s28
    v_mul_u32_u24 v4, 73728, v3
    v_lshl_add_u32 v4, v2, 4, v4
    v_and_b32 v5, 63, v0
    v_lshlrev_b32 v5, 4, v5
    """)
    wd_addr_setup(e, 9, 10, 8, 6, 7)
    e("s_waitcnt lgkmcnt(0)")
    stamp(e, 1, prof)
    srd(e, 12, 4, 0, D * F * 2); srd(e, 16, 6, 0, D * F * 2); srd(e, 20, 8, 0, D * F * 2); srd(e, 24, 10, WS_W, 16 * W_SPLIT)
    RB = 32
    BIG = 0x7f000000
    for i in range(3):
        sb, sk_, sm = 42 + 3 * i, 43 + 3 * i, 44 + 3 * i
        e(f"""
        s_add_u32 s30, s29, {448*i}
        s_cmp_ge_u32 s30, 648
        s_cselect_b32 s31, 648, 0
        s_cselect_b32 s{sm}, 1, 0
        s_sub_u32 s30, s30, s31
        s_mul_i32 s{sb}, s30, 3641
        s_lshr_b32 s{sb}, s{sb}, 16
        s_mul_i32 s31, s{sb}, 18
        s_sub_u32 s{sk_}, s30, s31
        s_mul_i32 s34, s{sk_}, 294912
        s_lshl_b32 s35, s{sb}, 8
        s_add_u32 s34, s34, s35
        """)
        if i == 2:
            e(f"s_cmp_ge_u32 s30, 648\ns_cselect_b32 s34, {BIG}, s34")
        if i == 1:
            e(f"s_cmp_eq_u32 s{sm}, 1\ns_cbranch_scc1 L_sh_m1")
            for sr_ in (12, 16):
                if sr_ == 16: e("L_sh_m1:")
                for r in range(8):
                    e(f"buffer_load_dwordx4 v[{RB+32*i+4*r}:{RB+32*i+4*r+3}], v4, s[{sr_}:{sr_+3}], s34 offen")
                    if r < 7: e("s_add_u32 s34, s34, 9216")
                if sr_ == 12: e("s_branch L_sh_m2")
            e("L_sh_m2:")
        else:
            sr_ = 12 if i == 0 else 16
            for r in range(8):
                e(f"buffer_load_dwordx4 v[{RB+32*i+4*r}:{RB+32*i+4*r+3}], v4, s[{sr_}:{sr_+3}], s34 offen")
                if r < 7: e("s_add_u32 s34, s34, 9216")
    R = RB + 96
    if not OPT['nowd']:
        e(f"""
        s_cmp_lt_u32 s29, 376
        s_cbranch_scc1 L_sh_nold
        s_add_u32 s30, s29, 200
        """)
        wd_loads(e, 30, 51, 52, R, 9, 20)
        e("s_branch L_sh_ld2\nL_sh_nold:")
        e(f"s_mov_b32 s34, {BIG}")
        for r in range(8): e(f"buffer_load_dword v{R+r}, v5, s[20:23], s34 offen")
        e("L_sh_ld2:")
    else:
        srd(e, 20, 10, WS_CNT, 8192)
        e(f"""
        s_lshl_b32 s34, s29, 10
        v_mov_b32 v{R}, 0
        v_mov_b32 v{R+1}, 0
        v_mov_b32 v{R+2}, 0
        v_mov_b32 v{R+3}, 0
        buffer_store_dwordx4 v[{R}:{R+3}], v5, s[20:23], s34 offen
        """)
    stamp(e, 2, prof)
    nld = 25 if OPT['nowd'] else 32
    nst = 0
    for i in range(3):
        sb, sk_, sm = 42 + 3 * i, 43 + 3 * i, 44 + 3 * i
        e(f"""
        s_mul_i32 s35, s{sk_}, 43
        s_lshr_b32 s35, s35, 8
        s_add_u32 s35, s35, s{sm}
        s_mul_i32 s36, s35, 6
        s_add_u32 s36, s36, s{sk_}
        s_lshl_b32 s36, s36, 10
        s_lshl_b32 s37, s{sb}, 3
        """)
        if i == 2: e(f"s_cmp_ge_u32 s{sb}, 36\ns_cbranch_scc1 L_sh_w1done")
        e(f"s_waitcnt vmcnt({min(63, nld - 8*(i+1) + nst)})")
        if i == 0: stamp(e, 3, prof)
        def store(ec, reg):
            e(f"""
            s_mul_i32 s38, s37, 3641
            s_lshr_b32 s38, s38, 16
            s_mul_i32 s38, s38, {W_SPLIT - 18 * STAGE}
            s_mul_i32 s39, s37, {STAGE}
            s_add_u32 s38, s38, s39
            s_add_u32 s38, s38, s36
            s_add_u32 s37, s37, 1
            buffer_store_dwordx4 v[{reg}:{reg+3}], v5, s[24:27], s38 offen {OPT['wstf']}
            """)
        transpose_store(e, RB + 32 * i, store)
        nst += 8
    e("L_sh_w1done:")
    stamp(e, 4, prof)
    if not OPT['nowd']:
        e("s_cmp_lt_u32 s29, 376\ns_cbranch_scc1 L_sh_done")
        wd_stores(e, 51, 52, RB + 96, 10, 8, 11, 24, 16, 16)
        e("L_sh_done:")
    stamp(e, 5, prof); stamp(e, 6, prof)
    if prof:
        e("s_waitcnt vmcnt(0)")
        stamp(e, 7, prof)
        stamp_flush(e, 8, prof, 2)
    e("s_endpgm")

def emit_helper(e, prof):
    e(f"""
    s_load_dwordx4 s[4:7], s[0:1], {KA['wg']}
    s_load_dwordx2 s[8:9], s[0:1], {KA['wd']}
    s_load_dwordx2 s[10:11], s[0:1], {KA['ws']}
    s_load_dwordx2 s[36:37], s[0:1], {KA['q']}
    """)
    stamp(e, 0, prof)
    if OPT['pf']: code_prefetch(e, "L_front_conv", "L_text_end", OPT['pf'], 12, "sh")
    e(f"""
    v_lshrrev_b32 v1, 6, v0
    v_and_b32 v5, 63, v0
    v_lshrrev_b32 v6, 3, v5
    v_readfirstlane_b32 s28, v1
    v_and_b32 v7, 7, v0
    v_mul_u32_u24 v6, 9216, v6
    v_lshl_add_u32 v6, v7, 4, v6
    v_lshlrev_b32 v5, 4, v5
    s_lshl_b32 s29, s3, 2
    s_add_u32 s29, s29, s28
    s_lshr_b32 s30, s3, 3
    s_lshl_b32 s30, s30, 2
    s_add_u32 s30, s30, s28
    v_mov_b32 v16, 0
    v_mov_b32 v17, 0
    v_mov_b32 v18, 0
    v_mov_b32 v19, 0
    s_lshl_b32 s34, s29, 10
    s_waitcnt lgkmcnt(0)
    """)
    stamp(e, 1, prof)
    srd(e, 12, 4, 0, D * F * 2); srd(e, 16, 6, 0, D * F * 2); srd(e, 20, 8, 0, D * F * 2); srd(e, 24, 10, WS_CNT, 8192); srd(e, 40, 36, 0, ACT)
    e("buffer_store_dwordx4 v[16:19], v5, s[24:27], s34 offen")
    e("s_cmp_ge_u32 s30, 32\ns_cbranch_scc1 L_hp_w")
    if OPT['pq']:
        e(f"""
        s_and_b32 s31, s3, 3
        s_lshl_b32 s31, s31, 2
        s_and_b32 s32, s30, 3
        s_add_u32 s31, s31, s32
        s_lshr_b32 s32, s30, 2
        s_lshl_b32 s32, s32, 1
        s_bfe_u32 s33, s3, 0x10002
        s_add_u32 s32, s32, s33
        s_lshl_b32 s32, s32, 4
        s_add_u32 s31, s31, s32
        s_mul_i32 s31, s31, 9216
        """)
        for n in range(9):
            e(f"buffer_load_dwordx4 v[{20+4*n}:{23+4*n}], v5, s[40:43], s31 offen offset:{(n%4)*1024}")
            if n % 4 == 3: e("s_add_u32 s31, s31, 4096")
    e("s_branch L_hp_r\nL_hp_w:")
    if OPT['pw']:
        e(f"""
        s_sub_u32 s31, s30, 32
        s_mul_i32 s32, s31, 43
        s_lshr_b32 s32, s32, 8
        s_mul_i32 s33, s32, 6
        s_sub_u32 s31, s31, s33
        s_and_b32 s33, s3, 3
        s_lshl_b32 s33, s33, 2
        s_add_u32 s32, s32, s33
        s_mul_i32 s33, s32, 576
        s_and_b32 s32, s32, 1
        s_lshl_b32 s32, s32, 6
        s_add_u32 s33, s33, s32
        s_cmp_ge_u32 s31, 4
        s_cselect_b32 s12, s16, s12
        s_cselect_b32 s13, s17, s13
        s_and_b32 s31, s31, 3
        s_mul_i32 s31, s31, {144*9216}
        s_add_u32 s33, s33, s31
        """)
        for n in range(18):
            e(f"buffer_load_dwordx4 v[{20+4*n}:{23+4*n}], v6, s[12:15], s33 offen\ns_add_u32 s33, s33, {8*9216}")
        srd(e, 12, 4, 0, D * F * 2)
    e("L_hp_r:")
    stamp(e, 2, prof)
    if OPT['pall']:
        e("s_lshl_b32 s31, s29, 10\ns_mov_b32 s32, 0\nL_hp_l:")
        for m in (12, 16, 20):
            e(f"s_waitcnt vmcnt({OPT['pall']-1})\nbuffer_load_dwordx4 v[20:23], v5, s[{m}:{m+3}], s31 offen")
        e(f"s_add_u32 s31, s31, {448*1024}\ns_add_u32 s32, s32, 1\ns_cmp_lt_u32 s32, 12\ns_cbranch_scc1 L_hp_l")
    for i in range(3, 7): stamp(e, i, prof)
    if prof:
        e("s_waitcnt vmcnt(0)")
        stamp(e, 7, prof)
        stamp_flush(e, 8, prof, 2)
    e("s_endpgm")

def emit_front_kernel(e, name="front_kernel", prof=False):
    kernel_head(e, name)
    e(f"""
    s_cmp_ge_u32 s2, 256
    s_cbranch_scc1 L_front_end
    s_and_b32 s4, s2, 7
    s_lshr_b32 s5, s2, 3
    s_mul_i32 s3, s4, 18
    s_add_u32 s3, s3, s5
    s_cmp_lt_u32 s5, 18
    s_cbranch_scc1 L_front_conv
    s_sub_u32 s3, s2, 144
    """)
    (emit_helper if OPT['nosh'] else emit_shuffle)(e, prof)
    e("L_front_conv:")
    emit_conv(e, prof)
    e("L_front_end:\ns_endpgm")
    return dict(name=name, grid=256, block=256, lds=4 * CONV_LDS_W, desc=kernel_desc(name, 256, sgpr=102))
```

```python
from common import *
import k_ffn as F
from k_ffn import (V_LA, V_LAN, V_GA, V_ST, V_C2, V_L16, FB, HB0, S_W, S_XN, S_P, S_WV, S_C1, S_DMA, S_SLOT, S_RD,
                   S_ST0, S_ST1, S_IDX, S_CNT, C1, C2, dma_ops, p1_stage, p2_stage, gelu_ops, out_ops)
from k_ln import rowsum, YPAD

WS_CNT = 120 * MiB + 65536
CNT_BYTES = 8192
SPIN_MAX = 100000
LDS_Y = 4 * STAGE
LDS_TOTAL = LDS_Y + 72 * YPAD
OPT = dict(sleep=1, dmaf="sc1", unr2=0)
S_J, S_G, S_INV, S_LAY, S_JJ, S_RP, S_THR, S_WF, S_WT = 38, 39, 40, 41, 42, 43, 44, 45, 46
S_MISC, S_FL, S_OUT = 24, 48, 52
BIG = 0x7f000000
XP, Y = 204, 214
V_A0, V_A1, V_PT, V_X0, V_X1, V_FG, V_FW, V_FV = 232, 233, 234, 235, 236, 237, 238, 239
X, Dd, PK, T, PB = 8, 26, 44, 54, 58

def pr(a): return f"v[{a}:{a+1}]"
def pk(op, d, a, b, mod=""): return f"v_pk_{op}_f32 {pr(d)}, {pr(a)}, {pr(b)} {mod}".rstrip()
BC = "op_sel_hi:[1,0]"
NEG = "op_sel_hi:[1,0] neg_lo:[0,1] neg_hi:[0,1]"

def round18(e, src, pkr, dst):
    for i in range(9): e(f"v_cvt_pk_bf16_f32 v{pkr+i}, v{src+2*i}, v{src+2*i+1}")
    if dst is not None:
        for i in range(9):
            unpack_lo(e, dst + 2*i, pkr + i); unpack_hi(e, dst + 2*i + 1, pkr + i)

def layernorm(e, unpack):
    e(pk("add", T, X, X + 2)); e(pk("add", T + 2, X + 4, X + 6))
    for i in range(4, 9): e(pk("add", T + 2 * (i & 1), T + 2 * (i & 1), X + 2 * i))
    e(pk("add", T, T, T + 2))
    e(f"v_add_f32 v{T}, v{T}, v{T+1}")
    rowsum(e, T, T + 1)
    e(f"v_mul_f32 v{T}, s{S_INV}, v{T}")
    for i in range(9): e(pk("add", Dd + 2*i, X + 2*i, T, NEG))
    e(pk("mul", T + 2, Dd, Dd))
    for i in range(1, 9): e(f"v_pk_fma_f32 {pr(T+2)}, {pr(Dd+2*i)}, {pr(Dd+2*i)}, {pr(T+2)}")
    e(f"v_add_f32 v{T+2}, v{T+2}, v{T+3}")
    rowsum(e, T + 2, T + 3)
    e(f"v_mul_f32 v{T+2}, s{S_INV}, v{T+2}")
    e(f"v_cvt_pk_bf16_f32 v{T+1}, v{T}, v{T+2}")
    unpack_hi(e, T + 2, T + 1); unpack_lo(e, T, T + 1)
    e(f"v_add_f32 v{T+2}, 0x3727c5ac, v{T+2}")
    e(f"v_cvt_pk_bf16_f32 v{T+2}, v{T+2}, v{T+2}")
    unpack_hi(e, T + 2, T + 2)
    e(f"v_sqrt_f32 v{T+2}, v{T+2}")
    for i in range(9): e(pk("add", Dd + 2*i, X + 2*i, T, NEG))
    e(f"v_cvt_pk_bf16_f32 v{T+2}, v{T+2}, v{T+2}")
    unpack_hi(e, T + 2, T + 2)
    e(f"v_rcp_f32 v{T+2}, v{T+2}")
    round18(e, Dd, PK, Dd)
    for i in range(9): e(pk("mul", Dd + 2*i, Dd + 2*i, T + 2, BC))
    round18(e, Dd, PK, Dd if unpack else None)

def signal(e, u, voff, nvm):
    e(f"""
    s_waitcnt vmcnt({nvm})
    s_barrier
    s_cmp_lg_u32 s{S_WV}, 0
    s_cbranch_scc1 L_sig_{u}
    s_mov_b64 exec, 1
    v_mov_b32 v{V_FV}, 1
    buffer_atomic_add v{V_FV}, v{voff}, s[{S_FL}:{S_FL+3}], 0 offen sc1
    s_mov_b64 exec, -1
    L_sig_{u}:
    """)

def spin(e, u, voff, sthr, sdst):
    e(f"""
    s_mov_b32 s47, 0
    L_spin_{u}:
    buffer_load_dword v{V_FV}, v{voff}, s[{S_FL}:{S_FL+3}], 0 offen sc1
    s_add_u32 s47, s47, 1
    s_waitcnt vmcnt(0)
    v_readfirstlane_b32 s{sdst}, v{V_FV}
    s_cmp_ge_u32 s{sdst}, s{sthr}
    s_cbranch_scc1 L_spun_{u}
    """)
    if OPT['sleep']: e(f"s_sleep {OPT['sleep']}")
    e(f"""
    s_cmp_lt_u32 s47, {SPIN_MAX}
    s_cbranch_scc1 L_spin_{u}
    L_spun_{u}:
    """)

def wait_group(e, u):
    e(f"s_add_u32 s{S_THR}, s{S_THR}, 16\ns_cmp_lg_u32 s{S_WV}, 0\ns_cbranch_scc1 L_wg_{u}")
    spin(e, u, V_FG, S_THR, 37)
    e(f"L_wg_{u}:\ns_barrier")

def dma3(e):
    e(f"s_mov_b32 s{S_DMA}, 0\ns_mul_i32 s{S_SLOT}, s{S_WV}, 9216")
    for st in range(3):
        for x in dma_ops():
            e(x)
            if x.startswith("s_add"): e("s_nop 0")
        e(f"s_add_u32 s{S_DMA}, s{S_DMA}, {STAGE}\ns_add_u32 s{S_SLOT}, s{S_SLOT}, {STAGE}")

def emit_main(e, name="main_kernel", prof=False):
    F.OPT['dmaf'] = OPT['dmaf']
    kernel_head(e, name)
    lg = F.OPT['spx'].bit_length() - 1
    e(f"""
    s_cmp_ge_u32 s2, 256
    s_cbranch_scc1 L_main_end
    s_load_dwordx2 s[10:11], s[0:1], {KA['ws']}
    s_load_dwordx2 s[4:5], s[0:1], {KA['q']}
    s_load_dwordx4 s[52:55], s[0:1], {KA['wd']}
    """)
    stamp(e, 0, prof)
    e(f"""
    v_lshrrev_b32 v1, 6, v0
    v_and_b32 v2, 63, v0
    v_lshlrev_b32 v{V_L16}, 4, v2
    v_readfirstlane_b32 s{S_WV}, v1
    s_bfe_u32 s{S_J}, s2, {hex((4-lg) << 16)}
    s_and_b32 s{S_J}, s{S_J}, 7
    s_lshl_b32 s{S_J}, s{S_J}, {lg}
    s_bfe_u32 s6, s2, {hex((lg << 16) | 3)}
    s_add_u32 s{S_J}, s{S_J}, s6
    s_lshr_b32 s{S_G}, s2, {3 + lg}
    s_lshl_b32 s{S_G}, s{S_G}, {lg - 1}
    s_and_b32 s6, s2, 7
    s_lshr_b32 s6, s6, {4 - lg}
    s_add_u32 s{S_G}, s{S_G}, s6
    s_lshl_b32 s{S_JJ}, s{S_G}, 4
    s_add_u32 s{S_JJ}, s{S_JJ}, s{S_J}
    s_lshl_b32 s{S_RP}, s{S_JJ}, 2
    s_add_u32 s{S_RP}, s{S_RP}, s{S_WV}
    s_mul_i32 s{S_RP}, s{S_RP}, 2304
    v_and_b32 v8, 1, v0
    v_bfe_u32 v9, v0, 1, 5
    v_mul_u32_u24 v{V_A0}, 1152, v8
    v_lshl_add_u32 v{V_A1}, v9, 2, v{V_A0}
    v_lshl_add_u32 v{V_A0}, v9, 4, v{V_A0}
    v_lshlrev_b32 v10, 4, v0
    s_mul_i32 s6, s{S_JJ}, 9216
    s_add_u32 s7, s6, 4096
    s_add_u32 s8, s6, 8192
    s_waitcnt lgkmcnt(0)
    """)
    YL = 58
    srd(e, S_MISC, 10, WS_YT, ACT)
    e(f"""
    buffer_load_dwordx4 v[{YL}:{YL+3}], v10, s[{S_MISC}:{S_MISC+3}], s6 offen
    buffer_load_dwordx4 v[{YL+4}:{YL+7}], v10, s[{S_MISC}:{S_MISC+3}], s7 offen
    s_cmp_lg_u32 s{S_WV}, 0
    s_cselect_b32 s8, {BIG}, s8
    buffer_load_dwordx4 v[{YL+8}:{YL+11}], v10, s[{S_MISC}:{S_MISC+3}], s8 offen
    """)
    srd(e, S_P, 4, 0, ACT)
    e(f"""
    buffer_load_dwordx4 v[{XP}:{XP+3}], v{V_A0}, s[{S_P}:{S_P+3}], s{S_RP} offen
    buffer_load_dwordx4 v[{XP+4}:{XP+7}], v{V_A0}, s[{S_P}:{S_P+3}], s{S_RP} offen offset:512
    buffer_load_dword v{XP+8}, v{V_A1}, s[{S_P}:{S_P+3}], s{S_RP} offen offset:1024
    """)
    WD = 72
    srd(e, S_XN, 52, 0, D * F.F * 2)
    e(f"""
    s_lshl_b32 s6, s{S_G}, 2
    s_add_u32 s6, s6, s{S_WV}
    s_lshl_b32 s6, s6, 1
    """)
    for kk in range(2):
        e(f"""
        s_mul_i32 s7, s6, 57
        s_lshr_b32 s7, s7, 9
        s_mul_i32 s8, s7, 9
        s_sub_u32 s8, s6, s8
        s_mul_i32 s9, s{S_J}, 9
        s_add_u32 s9, s9, s7
        s_lshr_b32 s37, s9, 2
        s_lshl_b32 s37, s37, 7
        s_and_b32 s9, s9, 3
        s_lshl_b32 s9, s9, 1
        s_add_u32 s37, s37, s9
        s_mul_i32 s37, s37, 1152
        s_lshl_b32 s9, s8, 7
        s_add_u32 s{56+kk}, s37, s9
        s_mul_i32 s9, s8, {36*1024}
        s_lshl_b32 s37, s7, 10
        s_add_u32 s9, s9, s37
        s_add_u32 s{58+kk}, s9, {18*STAGE}
        s_cmp_ge_u32 s6, 81
        s_cselect_b32 s{56+kk}, {BIG}, s{56+kk}
        s_cselect_b32 s{58+kk}, {BIG}, s{58+kk}
        s_add_u32 s6, s6, 1
        """)
    e(f"""
    v_and_b32 v11, 7, v0
    v_bfe_u32 v12, v0, 3, 2
    v_cmp_gt_u32 vcc, 32, v2
    v_mov_b32 v13, s57
    v_mov_b32 v14, s56
    v_mul_u32_u24 v15, {32*1152}, v12
    v_cndmask_b32 v13, v13, v14, vcc
    v_lshl_add_u32 v15, v11, 4, v15
    v_add_u32 v13, v13, v15
    s_mov_b32 s6, 0
    """)
    for r in range(4):
        e(f"buffer_load_dwordx4 v[{WD+4*r}:{WD+4*r+3}], v13, s[{S_XN}:{S_XN+3}], s6 offen")
        e(f"buffer_load_dwordx4 v[{WD+16+4*r}:{WD+16+4*r+3}], v13, s[{S_XN}:{S_XN+3}], s6 offen offset:1152")
        if r < 3: e("s_add_u32 s6, s6, 9216")
    e(f"""
    s_mul_i32 s6, s{S_J}, {W_SPLIT}
    s_mul_i32 s7, s{S_WV}, 9216
    s_add_u32 s{S_W}, s10, s6
    s_addc_u32 s{S_W+1}, s11, 0
    s_mov_b32 s{S_W+2}, {W_SPLIT}
    s_mov_b32 s{S_W+3}, 0x20000
    v_add_u32 v{V_GA[0]}, s7, v{V_L16}
    v_add_u32 v{V_GA[1]}, 4096, v{V_GA[0]}
    v_add_u32 v{V_GA[2]}, 8192, v{V_GA[0]}
    """)
    dma3(e)
    e(f"""
    v_lshrrev_b32 v13, 5, v2
    v_lshlrev_b32 v104, 12, v13
    v_lshrrev_b32 v13, 2, v11
    v_lshl_add_u32 v104, v13, 11, v104
    v_lshl_add_u32 v104, v12, 8, v104
    v_and_b32 v13, 3, v11
    v_lshl_add_u32 v104, v13, 6, v104
    s_add_u32 s7, s7, {3*STAGE}
    v_add_u32 v104, s7, v104
    v_add_u32 v105, s7, v{V_L16}
    """)
    srd(e, S_XN, 10, WS_XN[0], ACT); srd(e, S_P, 10, WS_P[0], PBYTES); srd(e, S_FL, 10, WS_CNT, CNT_BYTES)
    e(f"""
    s_mov_b32 s{S_INV}, 0x3ae38e39
    s_mov_b32 s{S_LAY}, 0
    s_mov_b32 s{S_THR}, 0
    s_mov_b32 s{S_C1}, {hex(C1)}
    v_mov_b32 v{V_C2}, {hex(C2)}
    s_lshl_b32 s6, s{S_G}, 8
    v_mov_b32 v{V_FG}, s6
    s_lshl_b32 s6, s{S_J}, 8
    s_add_u32 s6, s6, 4096
    v_mov_b32 v{V_FW}, s6
    s_mov_b32 s6, 147456
    v_bfe_u32 v13, v2, 3, 1
    v_mul_lo_u32 v{V_ST}, v13, s6
    v_bfe_u32 v13, v2, 1, 2
    v_mul_u32_u24 v13, 2304, v13
    v_add_u32 v{V_ST}, v{V_ST}, v13
    v_lshl_add_u32 v{V_ST}, v8, 4, v{V_ST}
    v_lshrrev_b32 v13, 4, v2
    v_lshl_add_u32 v{V_ST}, v13, 5, v{V_ST}
    v_lshrrev_b32 v13, 2, v9
    v_and_b32 v14, 3, v9
    v_lshlrev_b32 v{V_PT}, 5, v13
    v_lshl_add_u32 v{V_PT}, v8, 4, v{V_PT}
    v_lshl_add_u32 v{V_PT}, v14, 2, v{V_PT}
    v_lshlrev_b32 v{V_X1}, 4, v8
    v_lshl_add_u32 v{V_X0}, v9, 8, v{V_X1}
    v_lshl_add_u32 v{V_X1}, v13, 8, v{V_X1}
    v_lshl_add_u32 v{V_X1}, v14, 2, v{V_X1}
    v_lshrrev_b32 v15, 3, v0
    v_mul_u32_u24 v15, {YPAD}, v15
    v_and_b32 v16, 7, v0
    v_lshl_add_u32 v15, v16, 4, v15
    v_add_u32 v15, {LDS_Y}, v15
    s_lshl_b32 s6, s{S_WV}, 2
    s_add_u32 s6, s6, {LDS_Y}
    v_lshl_add_u32 v16, v8, 1, s6
    v_mul_u32_u24 v13, {YPAD}, v13
    v_lshl_add_u32 v13, v14, 5, v13
    v_add_u32 v13, v13, v16
    v_mul_u32_u24 v14, {YPAD}, v9
    v_add_u32 v16, v16, v14
    """)
    for i in range(18): e(f"v_mov_b32 v{Y+i}, 0")
    e(f"""
    s_waitcnt vmcnt({3 + 8 + 27})
    ds_write_b128 v15, v[{YL}:{YL+3}]
    ds_write_b128 v15, v[{YL+4}:{YL+7}] offset:{32*YPAD}
    s_cmp_lg_u32 s{S_WV}, 0
    s_cbranch_scc1 L_main_y3
    ds_write_b128 v15, v[{YL+8}:{YL+11}] offset:{64*YPAD}
    L_main_y3:
    s_waitcnt lgkmcnt(0)
    s_barrier
    """)
    for h in range(2):
        for i in range(8): e(f"ds_read_u16_d16_hi v{Y+8*h+i}, v16 offset:{h*32*YPAD + i*16}")
    for i in range(2): e(f"ds_read_u16_d16_hi v{Y+16+i}, v13 offset:{64*YPAD + i*16}")
    e(f"s_waitcnt vmcnt({8 + 27})")
    for i in range(9):
        unpack_lo(e, X + 2*i, XP + i); unpack_hi(e, X + 2*i + 1, XP + i)
    stamp(e, 1, prof)
    e("L_main_gate:")
    layernorm(e, True)
    e("s_waitcnt lgkmcnt(0)")
    for i in range(9): e(pk("mul", Dd + 2*i, Dd + 2*i, Y + 2*i))
    round18(e, Dd, PK, Dd)
    for i in range(9): e(pk("add", X + 2*i, X + 2*i, Dd + 2*i))
    round18(e, X, XP, X)
    layernorm(e, False)
    e(f"""
    s_lshr_b32 s6, s{S_JJ}, 1
    s_mul_i32 s6, s6, 18432
    s_and_b32 s7, s{S_JJ}, 1
    s_lshl_b32 s7, s7, 7
    s_add_u32 s6, s6, s7
    s_lshl_b32 s7, s{S_WV}, 5
    s_add_u32 s6, s6, s7
    s_add_u32 s7, s6, 8192
    s_add_u32 s8, s6, 16384
    buffer_store_dwordx4 v[{PK}:{PK+3}], v{V_X0}, s[{S_XN}:{S_XN+3}], s6 offen sc1
    buffer_store_dwordx4 v[{PK+4}:{PK+7}], v{V_X0}, s[{S_XN}:{S_XN+3}], s7 offen sc1
    buffer_store_dword v{PK+8}, v{V_X1}, s[{S_XN}:{S_XN+3}], s8 offen sc1
    """)
    if prof: e(f"s_cmp_lg_u32 s{S_LAY}, 0\ns_cbranch_scc1 L_st2\ns_memtime s[68:69]\ns_memrealtime s[70:71]\nL_st2:")
    signal(e, "xn", V_FG, 0)
    e(f"""
    s_cmp_lg_u32 s{S_LAY}, 0
    s_cbranch_scc1 L_main_nowd
    s_mov_b32 s6, 0x05040100
    s_mov_b32 s7, 0x07060302
    """)
    for dw in range(4):
        Tt = 8 + 8 * (dw & 1)
        for h in range(2):
            for p in range(4):
                e(f"v_perm_b32 v{Tt+4*h+p}, v{WD+4*(2*p+1)+dw}, v{WD+4*(2*p)+dw}, s{6+h}")
        for h in range(2):
            ec = 2 * dw + h
            e(f"ds_write_b128 v104, v[{Tt+4*h}:{Tt+4*h+3}] offset:{(ec >> 2) * 1024 + (ec & 3) * 16}")
    e("s_waitcnt lgkmcnt(0)")
    for n in range(8): e(f"ds_read_b128 v[{WD+4*n}:{WD+4*n+3}], v105 offset:{n*1024}")
    for n in range(8):
        e(f"s_waitcnt lgkmcnt({7-n})")
        e(f"buffer_store_dwordx4 v[{WD+4*n}:{WD+4*n+3}], v{V_L16}, s[{S_W}:{S_W+3}], s{58 + (n >> 2)} offen sc1")
        if n % 4 < 3: e(f"s_add_u32 s{58 + (n >> 2)}, s{58 + (n >> 2)}, 9216")
    e("L_main_nowd:")
    e(f"""
    s_lshl_b32 s8, s{S_G}, 2
    s_add_u32 s8, s8, s{S_WV}
    s_mul_i32 s9, s8, {2*18432}
    s_mul_i32 s{S_ST0}, s8, {4*147456}
    s_mul_i32 s6, s{S_J}, 9216
    s_add_u32 s{S_ST0}, s{S_ST0}, s6
    s_add_u32 s{S_ST1}, s{S_ST0}, {2*147456}
    v_mov_b32 v{V_LA}, v{V_L16}
    v_add_u32 v{V_LAN}, {STAGE}, v{V_L16}
    s_mov_b32 s{S_RD}, {STAGE}
    s_mov_b32 s{S_IDX}, 0
    s_mov_b32 s{S_CNT}, 0
    """)
    wait_group(e, "xn")
    if prof: e(f"s_cmp_lg_u32 s{S_LAY}, 0\ns_cbranch_scc1 L_st3\ns_memtime s[72:73]\ns_memrealtime s[74:75]\nL_st3:")
    for n in range(36):
        e(f"buffer_load_dwordx4 {ar(4*n)}, v{V_L16}, s[{S_XN}:{S_XN+3}], s9 offen offset:{(n%4)*1024} sc1")
        if n % 4 == 3 and n < 35: e("s_add_u32 s9, s9, 4096")
    signal(e, "wd", V_FW, 0)
    if prof: e(f"s_cmp_lg_u32 s{S_LAY}, 0\ns_cbranch_scc1 L_st4\ns_memtime s[76:77]\ns_memrealtime s[78:79]\nL_st4:")
    for r in range(6): e(f"ds_read_b128 v[{FB+4*r}:{FB+4*r+3}], v{V_LA} offset:{r*1024}")
    e(f"v_mov_b32 v{V_FV}, 0")
    R = [V_LA, V_LAN]
    e(".p2align 6\nL_main_p1:")
    hreg = lambda mt: HB0 - 2 + 36 * mt
    p1_stage(e, 0, hreg, True, R[0], R[1], 18, extra={62: [f"v_readfirstlane_b32 s{S_WF}, v{V_FV}"], 68: [f"s_cmp_eq_u32 s{S_CNT}, 7"],
             69: [f"s_cselect_b32 s{S_WT}, 16, 0"], 71: [f"s_cmp_lt_u32 s{S_WF}, s{S_WT}"]})
    e("s_cbranch_scc1 L_main_wslow\nL_main_wok:")
    p1_stage(e, 1, hreg, True, R[1], R[0], 18, tail=[f"s_add_u32 s{S_CNT}, s{S_CNT}, 1", f"s_cmp_lt_u32 s{S_CNT}, 9"],
             extra={4: [f"buffer_load_dword v{V_FV}, v{V_FW}, s[{S_FL}:{S_FL+3}], 0 offen sc1"]})
    e("s_cbranch_scc1 L_main_p1")
    for r in range(6, 9): e(f"ds_read_b128 v[{FB+4*r}:{FB+4*r+3}], v{R[0]} offset:{r*1024}")
    ops, cv = gelu_ops(1, lambda mt: HB0 + 36 * mt + 34)
    for x in ops + cv: e(x)
    e("s_nop 1")
    if OPT['unr2']:
        for st in range(9):
            p2_stage(e, R[st & 1], R[1 - (st & 1)], [20, 24][st] if st < 2 else 27, 256 * st, 256 * st - 128, first=(st == 0))
        e("s_nop 7")
        for x in out_ops(2, 256 * 8 + 128): e(x)
    else:
        p2_stage(e, R[0], R[1], 20, 0, 0, first=True)
        e(f"s_mov_b32 s{S_CNT}, 0")
        e(".p2align 6\nL_main_p2:")
        p2_stage(e, R[1], R[0], 24, 256, 128)
        p2_stage(e, R[0], R[1], 27, 512, 384, tail=[f"s_add_u32 s{S_ST0}, s{S_ST0}, 512", f"s_add_u32 s{S_ST1}, s{S_ST1}, 512",
                 f"s_add_u32 s{S_CNT}, s{S_CNT}, 1", f"s_cmp_lt_u32 s{S_CNT}, 4"])
        e("s_cbranch_scc1 L_main_p2")
        e("s_nop 7")
        for x in out_ops(2, 128): e(x)
    if prof: e(f"s_cmp_lg_u32 s{S_LAY}, 0\ns_cbranch_scc1 L_st5\ns_memtime s[80:81]\ns_memrealtime s[82:83]\nL_st5:")
    signal(e, "p", V_FG, 0)
    e(f"""
    s_mul_i32 s6, s{S_JJ}, {16*9216}
    s_mul_i32 s7, s{S_WV}, 2304
    s_add_u32 s6, s6, s7
    """)
    for i in range(9):
        unpack_lo(e, X + 2*i, XP + i); unpack_hi(e, X + 2*i + 1, XP + i)
    wait_group(e, "p")
    if prof: e(f"s_cmp_lg_u32 s{S_LAY}, 0\ns_cbranch_scc1 L_st6\ns_memtime s[84:85]\ns_memrealtime s[86:87]\nL_st6:")
    for j in range(16):
        r = PB + 8 * j
        e(f"buffer_load_dwordx4 v[{r}:{r+3}], v{V_L16}, s[{S_P}:{S_P+3}], s6 offen sc1")
        e(f"buffer_load_dwordx4 v[{r+4}:{r+7}], v{V_L16}, s[{S_P}:{S_P+3}], s6 offen offset:1024 sc1")
        e(f"buffer_load_dword v{PB+128+j}, v{V_PT}, s[{S_P}:{S_P+3}], s6 offen offset:2048 sc1")
        if j < 15: e("s_add_u32 s6, s6, 9216")
    for j in range(16):
        e(f"s_waitcnt vmcnt({3*(15-j)})")
        for i in range(9):
            r = PB + 8 * j + i if i < 8 else PB + 128 + j
            if j == 0:
                unpack_lo(e, Dd + 2*i, r); unpack_hi(e, Dd + 2*i + 1, r)
            else:
                t = T + 2 * (i & 1)
                unpack_lo(e, t, r); unpack_hi(e, t + 1, r)
                e(pk("add", Dd + 2*i, Dd + 2*i, t))
    round18(e, Dd, PK, Dd)
    for i in range(9): e(pk("add", X + 2*i, X + 2*i, Dd + 2*i))
    e(f"s_cmp_lg_u32 s{S_LAY}, 0\ns_cbranch_scc1 L_main_fin")
    round18(e, X, XP, X)
    if prof: e(f"s_memtime s[88:89]\ns_memrealtime s[90:91]")
    dma3(e)
    e(f"""
    s_mov_b32 s{S_LAY}, 1
    s_add_u32 s{S_XN}, s{S_XN}, {WS_XN[1] - WS_XN[0]}
    s_addc_u32 s{S_XN+1}, s{S_XN+1}, 0
    s_add_u32 s{S_P}, s{S_P}, {WS_P[1] - WS_P[0]}
    s_addc_u32 s{S_P+1}, s{S_P+1}, 0
    s_branch L_main_gate
    L_main_wslow:
    """)
    spin(e, "w", V_FW, S_WT, S_WF)
    e("s_branch L_main_wok")
    e("L_main_fin:")
    round18(e, X, XP, None)
    srd(e, S_MISC, 54, 0, ACT)
    e(f"""
    buffer_store_dwordx4 v[{XP}:{XP+3}], v{V_A0}, s[{S_MISC}:{S_MISC+3}], s{S_RP} offen
    buffer_store_dwordx4 v[{XP+4}:{XP+7}], v{V_A0}, s[{S_MISC}:{S_MISC+3}], s{S_RP} offen offset:512
    buffer_store_dword v{XP+8}, v{V_A1}, s[{S_MISC}:{S_MISC+3}], s{S_RP} offen offset:1024
    """)
    if prof:
        e("s_waitcnt vmcnt(0)\ns_memtime s[92:93]\ns_memrealtime s[94:95]")
        stamp_flush(e, 9, prof, 3, stride=128)
    e("L_main_end:\ns_endpgm")
    return dict(name=name, grid=256, block=256, lds=LDS_TOTAL, desc=kernel_desc(name, 240, 144, sgpr=102))
```

```python
from common import *
from k_ln import rowsum, YPAD
from k_ffn import C1, C2

WS_CNT = 120 * MiB + 65536
CNT_BYTES = 8192
SPIN_MAX = 100000
LDS_Y = 4 * STAGE
LDS_TOTAL = LDS_Y + 72 * YPAD
BIG = 0x7f000000
WB = D * F * 2
OPT = dict(sleep=1, lag=5, flp=0, tight=0, d0=3, rdp=0, xw=1, stf="sc1", ga=20, nopipe=0, cyc=0, nogelu=0, nolds=0, nodma=0, nost=0, sl=0)
S_WG, S_WU, S_WD, S_XN, S_P, S_FL, S_A, S_B, S_MISC = 12, 16, 20, 24, 28, 32, 36, 40, 44
(S_WV, S_C1, S_SLOT, S_RD, S_ST0, S_ST1, S_IDX, S_CNT, S_O, S_T, S_J, S_G, S_JJ, S_RP, S_INV, S_LAY, S_PB, S_COL, S_O2, S_O3,
 S_SP3, S_SC3, S_WD0, S_INC5, S_COL0, S_PRG, S_SPIN, S_NX) = range(48, 76)
S_OUT = 6
LA, LAN, TRB = 1, 5, 9
V_D1, V_DH, V_D2, V_DC, V_DC3, V_ST, V_C2, V_L16, V_PL, V_FS, V_FP, V_FD, V_A, V_A4, V_X0, V_X4 = range(13, 29)
V_FV = 29
V_MK = 31
V_T = 32
G, T, U, HB = 40, 72, 104, 144
XP, Y = 216, 226
NV = 248
FB = 144
NA = 192
X, Dd, PK, TM, DT, SEL, MK = 104, 72, 92, 124, 40, 60, 128
ST1 = 8 * 9216
ST2 = 8 * 1152

def pr(a): return f"v[{a}:{a+1}]"
def pk(op, d, a, b, mod=""): return f"v_pk_{op}_f32 {pr(d)}, {pr(a)}, {pr(b)} {mod}".rstrip()
BC = "op_sel_hi:[1,0]"
NEG = "op_sel_hi:[1,0] neg_lo:[0,1] neg_hi:[0,1]"
def q4(a): return f"v[{a}:{a+3}]"
def mfma(Dr, A, B, C): return f"v_mfma_f32_16x16x32_bf16 {q4(Dr)}, {A}, {B}, " + ("0" if C is None else q4(C))
def add(d, i, x): d.setdefault(i, []).append(x)

def rstamp(e, i, prof, lay=None):
    if not prof: return
    op = "s_memtime" if OPT['cyc'] else "s_memrealtime"
    if lay is None: e(f"{op} s[{76+2*i}:{77+2*i}]")
    else: e(f"s_cmp_lg_u32 s{S_LAY}, {lay}\ns_cbranch_scc1 L_stp{i}\n{op} s[{76+2*i}:{77+2*i}]\nL_stp{i}:")

def round20(e, src, pkr, dst):
    for i in range(10): e(f"v_cvt_pk_bf16_f32 v{pkr+i}, v{src+2*i}, v{src+2*i+1}")
    if dst is not None:
        for i in range(10):
            unpack_lo(e, dst + 2*i, pkr + i); unpack_hi(e, dst + 2*i + 1, pkr + i)

def layernorm(e, unpack):
    T_ = TM
    e(pk("add", T_, X, X + 2)); e(pk("add", T_ + 2, X + 4, X + 6))
    for i in range(4, 10): e(pk("add", T_ + 2 * (i & 1), T_ + 2 * (i & 1), X + 2 * i))
    e(pk("add", T_, T_, T_ + 2))
    e(f"v_add_f32 v{T_}, v{T_}, v{T_+1}")
    rowsum(e, T_, T_ + 1)
    e(f"v_mul_f32 v{T_}, s{S_INV}, v{T_}")
    for i in range(10): e(pk("add", Dd + 2*i, X + 2*i, T_, NEG))
    for i in (8, 9): e(pk("mul", Dd + 2*i, Dd + 2*i, MK, BC))
    e(pk("mul", T_ + 2, Dd, Dd))
    for i in range(1, 10): e(f"v_pk_fma_f32 {pr(T_+2)}, {pr(Dd+2*i)}, {pr(Dd+2*i)}, {pr(T_+2)}")
    e(f"v_add_f32 v{T_+2}, v{T_+2}, v{T_+3}")
    rowsum(e, T_ + 2, T_ + 3)
    e(f"v_mul_f32 v{T_+2}, s{S_INV}, v{T_+2}")
    e(f"v_cvt_pk_bf16_f32 v{T_+1}, v{T_}, v{T_+2}")
    unpack_hi(e, T_ + 2, T_ + 1); unpack_lo(e, T_, T_ + 1)
    e(f"v_add_f32 v{T_+2}, 0x3727c5ac, v{T_+2}")
    e(f"v_cvt_pk_bf16_f32 v{T_+2}, v{T_+2}, v{T_+2}")
    unpack_hi(e, T_ + 2, T_ + 2)
    e(f"v_sqrt_f32 v{T_+2}, v{T_+2}")
    for i in range(10): e(pk("add", Dd + 2*i, X + 2*i, T_, NEG))
    e(f"v_cvt_pk_bf16_f32 v{T_+2}, v{T_+2}, v{T_+2}")
    unpack_hi(e, T_ + 2, T_ + 2)
    e(f"v_rcp_f32 v{T_+2}, v{T_+2}")
    round20(e, Dd, PK, Dd)
    for i in range(10): e(pk("mul", Dd + 2*i, Dd + 2*i, T_ + 2, BC))
    round20(e, Dd, PK, Dd if unpack else None)

def dma_list(srd_, vreg, start, step, step5=None):
    L = []
    for n in range(9):
        pre = [f"s_add_u32 m0, s{S_SLOT}, {n*1024}" if n else f"s_mov_b32 m0, s{S_SLOT}"]
        if n == 0: pre.append(start)
        else: pre.append(f"s_add_u32 s{S_O}, s{S_O}, {step5 if (n == 5 and step5) else step}")
        L.append((pre, f"buffer_load_dwordx4 v{vreg}, s[{srd_}:{srd_+3}], s{S_O} offen lds"))
    return L
def mov_o(src): return f"s_mov_b32 s{S_O}, {src}"
def add_o(src, imm): return f"s_add_u32 s{S_O}, {src}, {imm}"

SLOT_UPD = [f"s_add_u32 s{S_SLOT}, s{S_SLOT}, {STAGE}", f"s_cmp_ge_u32 s{S_SLOT}, {4*STAGE}",
            f"s_cselect_b32 s{S_T}, {4*STAGE}, 0", f"s_sub_u32 s{S_SLOT}, s{S_SLOT}, s{S_T}"]
RD_UPD = [f"s_add_u32 s{S_RD}, s{S_RD}, {STAGE}", f"s_cmp_eq_u32 s{S_RD}, {4*STAGE}", f"s_cselect_b32 s{S_RD}, 0, s{S_RD}"]
RDPAT = [[0, 0, 1, 1, 2, 2, 3, 3, 4, 5, 6, 7], [0, 0, 1, 1, 2, 2, 3, 3, 4, 4, 5, 5], [0, 1, 1, 2, 3, 3, 4, 5, 5, 6, 7, 7], [0, 1, 2, 3, 4, 5, 6, 7, 7, 8, 8, 9]]

def frag_reads(buf, k, addr, u):
    d = FB + 24 * buf + 4 * k
    return [f"ds_read_b64_tr_b16 a[{d}:{d+1}], v{addr} offset:{u*4096}", f"ds_read_b64_tr_b16 a[{d+2}:{d+3}], v{addr} offset:{u*4096+2048}"]

def stage(e, fragmap, nextmap, mf_of, la, lan, dma, dpos, fill, pre, vmn, last=False):
    pat = RDPAT[OPT['rdp']]
    fl = {}; pr_ = {}
    for g in range(6):
        if g == 5:
            add(pr_, 60, f"s_waitcnt vmcnt({vmn}) lgkmcnt(0)"); add(pr_, 60, "s_barrier")
        else: add(pr_, 12 * g, "s_waitcnt lgkmcnt(0)")
        if g == 5 and last: continue
        rd = []
        for k in range(6):
            if g < 5: u, t = fragmap(6 * (g + 1) + k); rd += frag_reads((g + 1) & 1, k, la + t, u)
            else: u, t = nextmap(k); rd += frag_reads(0, k, lan + t, u)
        for x, p in zip(rd, pat): add(fl, 12 * g + p, x)
    for (prs, d), p in zip(dma, dpos):
        for x in prs: add(fl, p - 1, x)
        add(fl, p, d)
    for s, x in zip([2, 3, 3], RD_UPD): add(fl, s, x)
    for s, x in zip([58, 59, 59, 59], SLOT_UPD): add(fl, s, x)
    for t in range(4): add(fl, 66 + t, f"v_add_u32 v{la+t}, s{S_RD}, v{TRB+t}")
    for i in range(72):
        g, r = divmod(i, 12)
        f = 6 * g + (r >> 1)
        a = FB + 24 * (g & 1) + 4 * (r >> 1)
        for x in pre.get(i, []): e(x)
        for x in pr_.get(i, []): e(x)
        e(mf_of(f, r & 1, f"a[{a}:{a+3}]"))
        for x in fl.get(i, []) + fill.get(i, []):
            if OPT['nogelu'] and x.startswith("v_") and not x.startswith(("v_add_u32", "v_cmp", "v_mov")): continue
            if OPT['nolds'] and x.startswith("ds_read"): continue
            if OPT['nodma'] and x.endswith(" lds"): continue
            if OPT['nost'] and x.startswith("buffer_store_dwordx4"): continue
            e(x)

P1MAP = lambda f: (f >> 2, f & 3)
P2MAP = lambda f: (f % 9, f // 9)
DP1 = [7, 10, 19, 22, 31, 34, 43, 46, 55]

def chain(vals, tmp):
    o = []
    for k, v in enumerate(vals): o.append(f"v_mul_f32 v{tmp+k}, v{v}, v{v}")
    for k, v in enumerate(vals): o.append(f"v_fma_f32 v{tmp+k}, v{tmp+k}, v{V_C2}, s{S_C1}")
    for k, v in enumerate(vals): o.append(f"v_mul_f32 v{tmp+k}, v{tmp+k}, v{v}")
    for k, v in enumerate(vals): o.append(f"v_exp_f32 v{tmp+k}, v{tmp+k}")
    for k, v in enumerate(vals): o.append(f"v_add_f32 v{tmp+k}, 1.0, v{tmp+k}")
    for k, v in enumerate(vals): o.append(f"v_rcp_f32 v{tmp+k}, v{tmp+k}")
    for k, v in enumerate(vals): o.append(f"v_mul_f32 v{v}, v{v}, v{tmp+k}")
    return o
def quad(base, q): return [base + 4 * q + i for i in range(4)]
def fin_mul(q): return [f"v_mul_f32 v{U+4*q+i}, v{T+4*q+i}, v{U+4*q+i}" for i in range(4)]
def fin_cvt(q, hb):
    t, mt = q >> 1, q & 1
    return [f"v_cvt_pk_bf16_f32 v{hb + 36*mt + 2*t + h}, v{U+4*q+2*h}, v{U+4*q+2*h+1}" for h in range(2)]

def spread(ops, lo, hi):
    d = {}
    for n, x in enumerate(ops): add(d, lo + n * (hi - lo) // len(ops), x)
    return d
def split(d, n):
    out = [{} for _ in range(n)]
    for s, xs in d.items(): out[s // 72][s % 72] = xs
    return out

def fin_sched(nslots, idx, hb):
    na = OPT['ga'] // 4
    ops = []
    for q in range(na): ops += fin_mul(q)
    for q in range(na, 8): ops += chain(quad(T, q), V_T + 4 * (q & 1)) + fin_mul(q)
    d = spread(ops, 3, nslots - 16)
    def burst(qs, s):
        if idx: add(d, s, f"s_set_gpr_idx_on s{S_IDX}, gpr_idx(DST)")
        for q in qs:
            for x in fin_cvt(q, hb): add(d, s, x)
        if idx: add(d, s, "s_set_gpr_idx_off")
    return d, burst

def spin(e, u, need, reg):
    e(f"""
    s_mov_b32 s{S_SPIN}, 0
    L_spin_{u}:
    buffer_load_dword v{reg}, v{V_FP}, s[{S_FL}:{S_FL+3}], 0 offen sc1
    s_add_u32 s{S_SPIN}, s{S_SPIN}, 1
    s_waitcnt vmcnt(0)
    v_cmp_gt_u32 vcc, s{need}, v{reg}
    s_cmp_ge_u32 s{S_SPIN}, {SPIN_MAX}
    s_cbranch_scc1 L_spun_{u}
    s_cbranch_vccz L_spun_{u}
    """)
    if OPT['sleep']: e(f"s_sleep {OPT['sleep']}")
    e(f"s_branch L_spin_{u}\nL_spun_{u}:")

def sig_ops(k):
    return [f"s_add_u32 s{S_T}, s{S_PRG}, {k}", f"v_mov_b32 v{V_FD}, s{S_T}",
            f"buffer_store_dword v{V_FD}, v{V_FS}, s[{S_FL}:{S_FL+3}], 0 offen sc1"]
def pload(sg, i):
    a = 16 * sg + 4 * i
    return [f"s_add_u32 s{S_NX}, s{S_PB}, {i * 4 * 9216}" if i else f"s_mov_b32 s{S_NX}, s{S_PB}",
            f"buffer_load_dwordx4 a[{a}:{a+3}], v{V_PL}, s[{S_P}:{S_P+3}], s{S_NX} offen offset:{sg*256} sc1"]
def red_mfma(sg):
    d = DT + 4 * (sg >> 1)
    return [mfma(d, q4(SEL + 4 * (sg & 1)), f"a[{16*sg+4*i}:{16*sg+4*i+3}]", None if (i == 0 and sg % 2 == 0) else d) for i in range(4)]

def out_ops(t0, off):
    L = []
    for mt in range(2):
        O = V_T + 4 * mt
        for h in range(2):
            a = G + 8 * (t0 + h) + 4 * mt
            L.append(f"v_cvt_pk_bf16_f32 v{O+2*h}, v{a}, v{a+1}")
            L.append(f"v_cvt_pk_bf16_f32 v{O+2*h+1}, v{a+2}, v{a+3}")
        L.append(f"buffer_store_dwordx4 {q4(O)}, v{V_ST}, s[{S_P}:{S_P+3}], s{S_ST0+mt} offen offset:{off} {OPT['stf']}".rstrip())
    return L

def emit_main(e, name="main_kernel", prof=False):
    kernel_head(e, name)
    LAG = OPT['lag']
    e(f"""
    s_cmp_ge_u32 s2, 256
    s_cbranch_scc1 L_main_end
    s_load_dwordx2 s[10:11], s[0:1], {KA['ws']}
    s_load_dwordx2 s[4:5], s[0:1], {KA['q']}
    s_load_dwordx4 s[36:39], s[0:1], {KA['wg']}
    s_load_dwordx4 s[40:43], s[0:1], {KA['wd']}
    """)
    rstamp(e, 0, prof)
    e(f"""
    v_lshrrev_b32 v32, 6, v0
    v_and_b32 v33, 63, v0
    v_lshlrev_b32 v{V_L16}, 4, v33
    v_readfirstlane_b32 s{S_WV}, v32
    s_and_b32 s{S_J}, s2, 3
    s_lshl_b32 s{S_J}, s{S_J}, 2
    s_bfe_u32 s6, s2, 0x20003
    s_add_u32 s{S_J}, s{S_J}, s6
    s_lshr_b32 s{S_G}, s2, 5
    s_lshl_b32 s{S_G}, s{S_G}, 1
    s_bfe_u32 s6, s2, 0x10002
    s_add_u32 s{S_G}, s{S_G}, s6
    s_lshl_b32 s{S_JJ}, s{S_G}, 4
    s_add_u32 s{S_JJ}, s{S_JJ}, s{S_J}
    s_lshl_b32 s{S_RP}, s{S_JJ}, 2
    s_add_u32 s{S_RP}, s{S_RP}, s{S_WV}
    s_mul_i32 s{S_RP}, s{S_RP}, 2304
    v_and_b32 v34, 1, v0
    v_bfe_u32 v35, v0, 1, 2
    v_bfe_u32 v36, v0, 3, 1
    v_bfe_u32 v37, v0, 4, 1
    v_bfe_u32 v38, v0, 5, 1
    v_mul_u32_u24 v{V_A}, 1152, v34
    v_lshl_add_u32 v{V_A}, v38, 7, v{V_A}
    v_lshl_add_u32 v{V_A}, v36, 6, v{V_A}
    v_lshl_add_u32 v{V_A}, v37, 5, v{V_A}
    v_lshl_add_u32 v{V_A}, v35, 3, v{V_A}
    v_mov_b32 v39, {BIG}
    v_cmp_gt_u32 vcc, 32, v33
    v_lshlrev_b32 v40, 4, v0
    s_mul_i32 s6, s{S_JJ}, 9216
    v_cndmask_b32 v{V_A4}, v39, v{V_A}, vcc
    s_add_u32 s7, s6, 4096
    s_add_u32 s8, s6, 8192
    s_cmp_lg_u32 s{S_WV}, 0
    s_cselect_b32 s8, {BIG}, s8
    s_waitcnt lgkmcnt(0)
    """)
    YL = 44
    srd(e, S_MISC, 10, WS_YT, ACT); srd(e, S_P, 4, 0, ACT)
    e(f"""
    buffer_load_dwordx4 {q4(YL)}, v40, s[{S_MISC}:{S_MISC+3}], s6 offen
    buffer_load_dwordx4 {q4(YL+4)}, v40, s[{S_MISC}:{S_MISC+3}], s7 offen
    buffer_load_dwordx4 {q4(YL+8)}, v40, s[{S_MISC}:{S_MISC+3}], s8 offen
    """)
    for p in range(5): e(f"buffer_load_dwordx2 {pr(XP+2*p)}, v{V_A if p < 4 else V_A4}, s[{S_P}:{S_P+3}], s{S_RP} offen offset:{256*p}")
    srd(e, S_WG, 36, 0, WB); srd(e, S_WU, 38, 0, WB); srd(e, S_WD, 40, 0, WB)
    e(f"""
    s_mov_b32 s{S_OUT}, s42
    s_mov_b32 s{S_OUT+1}, s43
    s_and_b32 s8, s{S_J}, 1
    s_mul_i32 s9, s{S_J}, 576
    s_lshl_b32 s{S_COL0}, s8, 6
    s_add_u32 s{S_COL0}, s{S_COL0}, s9
    s_mul_i32 s{S_WD0}, s{S_COL0}, 576
    s_mul_i32 s{S_INC5}, s8, {288*1152}
    s_cmp_eq_u32 s{S_WV}, 3
    s_cselect_b32 s{S_INC5}, s{S_INC5}, 0
    s_sub_u32 s{S_INC5}, {ST2}, s{S_INC5}
    s_mul_i32 s{S_SLOT}, s{S_WV}, 9216
    s_mul_i32 s9, s{S_WV}, 72
    v_lshrrev_b32 v41, 3, v33
    v_lshrrev_b32 v42, 1, v41
    v_xor_b32 v42, v42, v35
    v_add_u32 v41, s9, v41
    v_lshlrev_b32 v43, 5, v42
    v_lshl_add_u32 v43, v34, 4, v43
    v_mul_u32_u24 v{V_D1}, 9216, v41
    v_mul_u32_u24 v{V_D2}, 1152, v41
    v_add_u32 v{V_D2}, v{V_D2}, v43
    v_and_b32 v56, 63, v43
    v_add_u32 v{V_DH}, v{V_D1}, v56
    v_add_u32 v{V_D1}, v{V_D1}, v43
    v_lshrrev_b32 v42, 1, v42
    v_mul_u32_u24 v42, {288*9216}, v42
    v_add_u32 v{V_DH}, v{V_DH}, v42
    """)
    first3 = [dma_list(S_WG, V_D1, mov_o(f"s{S_COL0}"), ST1), dma_list(S_WG, V_D1, add_o(f"s{S_COL0}", 288 * 9216), ST1),
              dma_list(S_WU, V_D1, mov_o(f"s{S_COL0}"), ST1)]
    def dma_now(L):
        for prs, d in L:
            for x in prs: e(x)
            e(d)
        e(f"s_add_u32 s{S_SLOT}, s{S_SLOT}, {STAGE}")
    d0 = OPT['d0']
    for s in range(d0): dma_now(first3[s])
    srd(e, S_XN, 10, WS_XN[0], ACT); srd(e, S_P, 10, WS_P[0], PBYTES); srd(e, S_FL, 10, WS_CNT, CNT_BYTES)
    e(f"""
    s_mov_b32 s{S_INV}, 0x3ae38e39
    s_mov_b32 s{S_LAY}, 0
    s_mov_b32 s{S_PRG}, 0
    s_mov_b32 s{S_C1}, {hex(C1)}
    v_mov_b32 v{V_C2}, {hex(C2)}
    s_mov_b32 s{S_RD}, {STAGE}
    s_lshl_b32 s8, s{S_G}, 8
    v_and_b32 v41, 15, v0
    v_lshl_add_u32 v{V_FP}, v41, 2, s8
    s_lshl_b32 s9, s{S_J}, 2
    s_add_u32 s8, s8, s9
    v_mov_b32 v42, s8
    v_cmp_eq_u32 vcc, 0, v0
    v_lshrrev_b32 v43, 4, v33
    v_mul_u32_u24 v{V_PL}, 9216, v43
    v_cndmask_b32 v{V_FS}, v39, v42, vcc
    v_lshl_add_u32 v{V_PL}, v41, 4, v{V_PL}
    s_mov_b32 s8, 147456
    v_mul_lo_u32 v{V_ST}, v36, s8
    v_mul_u32_u24 v42, 2304, v35
    v_add_u32 v{V_ST}, v{V_ST}, v42
    v_lshl_add_u32 v{V_ST}, v34, 4, v{V_ST}
    v_lshl_add_u32 v{V_ST}, v43, 5, v{V_ST}
    v_bfe_u32 v42, v0, 1, 3
    v_lshlrev_b32 v{V_X4}, 8, v42
    v_lshl_add_u32 v{V_X4}, v34, 4, v{V_X4}
    v_cmp_gt_u32 vcc, 16, v33
    v_lshl_add_u32 v{V_X0}, v37, 12, v{V_X4}
    v_lshl_add_u32 v{V_X0}, v38, 11, v{V_X0}
    v_cndmask_b32 v{V_X4}, v39, v{V_X4}, vcc
    v_lshrrev_b32 v42, 2, v33
    v_lshlrev_b32 v42, 7, v42
    v_and_b32 v43, 3, v0
    v_lshl_add_u32 v42, v43, 3, v42
    v_bfe_u32 v43, v0, 3, 2
    """)
    for t in range(4):
        e(f"v_xor_b32 v56, {t}, v43\nv_lshl_add_u32 v{TRB+t}, v56, 5, v42\nv_mov_b32 v{LA+t}, v{TRB+t}\nv_add_u32 v{LAN+t}, {STAGE}, v{TRB+t}")
    e(f"""
    v_lshrrev_b32 v41, 3, v0
    v_mul_u32_u24 v41, {YPAD}, v41
    v_and_b32 v42, 7, v0
    v_lshl_add_u32 v41, v42, 4, v41
    v_add_u32 v41, {LDS_Y}, v41
    v_lshlrev_b32 v42, 1, v38
    v_add_u32 v42, v42, v36
    v_lshl_add_u32 v42, v42, 1, v37
    v_lshrrev_b32 v43, 1, v35
    v_lshl_add_u32 v42, v42, 1, v43
    v_mul_u32_u24 v42, {YPAD}, v42
    v_and_b32 v43, 1, v35
    v_lshl_add_u32 v42, v43, 6, v42
    v_lshl_add_u32 v42, v34, 1, v42
    s_lshl_b32 s8, s{S_WV}, 2
    s_add_u32 s8, s8, {LDS_Y}
    v_add_u32 v42, s8, v42
    s_mul_i32 s{S_PB}, s{S_JJ}, {16*9216}
    s_mul_i32 s8, s{S_WV}, 2304
    s_add_u32 s{S_PB}, s{S_PB}, s8
    """)
    for i in range(20): e(f"v_mov_b32 v{Y+i}, 0")
    e(f"""
    s_waitcnt vmcnt({5 + 9*d0})
    ds_write_b128 v41, {q4(YL)}
    ds_write_b128 v41, {q4(YL+4)} offset:{32*YPAD}
    s_cmp_lg_u32 s{S_WV}, 0
    s_cbranch_scc1 L_main_y3
    ds_write_b128 v41, {q4(YL+8)} offset:{64*YPAD}
    L_main_y3:
    s_waitcnt lgkmcnt(0)
    s_barrier
    """)
    for p in range(5):
        if p == 4: e("s_mov_b64 exec, 0xffffffff")
        for i in range(4): e(f"ds_read_u16_d16_hi v{Y+4*p+i}, v42 offset:{p*16*YPAD + i*16}")
    e(f"s_mov_b64 exec, -1\ns_waitcnt vmcnt({9*d0})")
    for i in range(10):
        unpack_lo(e, X + 2*i, XP + i); unpack_hi(e, X + 2*i + 1, XP + i)
    rstamp(e, 1, prof)
    e(f"""
    L_main_gate:
    v_and_b32 v{MK}, 32, v0
    v_cmp_eq_u32 vcc, 0, v{MK}
    s_nop 1
    v_cndmask_b32 v{MK}, 0, 1.0, vcc
    """)
    layernorm(e, True)
    e("s_waitcnt lgkmcnt(0)")
    for i in range(10): e(pk("mul", Dd + 2*i, Dd + 2*i, Y + 2*i))
    round20(e, Dd, PK, Dd)
    for i in range(10): e(pk("add", X + 2*i, X + 2*i, Dd + 2*i))
    round20(e, X, XP, X)
    layernorm(e, False)
    e(f"""
    s_lshr_b32 s8, s{S_JJ}, 1
    s_mul_i32 s8, s8, 18432
    s_and_b32 s9, s{S_JJ}, 1
    s_lshl_b32 s9, s9, 7
    s_add_u32 s8, s8, s9
    s_lshl_b32 s9, s{S_WV}, 5
    s_add_u32 s8, s8, s9
    s_add_u32 s9, s8, 8192
    s_add_u32 s{S_T}, s8, 16384
    """)
    for pp in range(3):
        e(f"v_permlane16_swap_b32 v{PK+4*pp}, v{PK+4*pp+2}\nv_permlane16_swap_b32 v{PK+4*pp+1}, v{PK+4*pp+3}")
    e(f"""
    buffer_store_dwordx4 {q4(PK)}, v{V_X0}, s[{S_XN}:{S_XN+3}], s8 offen sc1
    buffer_store_dwordx4 {q4(PK+4)}, v{V_X0}, s[{S_XN}:{S_XN+3}], s9 offen sc1
    buffer_store_dwordx4 {q4(PK+8)}, v{V_X4}, s[{S_XN}:{S_XN+3}], s{S_T} offen sc1
    """)
    rstamp(e, 2, prof, 0); rstamp(e, 8, prof, 1)
    e(f"""
    s_lshl_b32 s8, s{S_G}, 2
    s_add_u32 s8, s8, s{S_WV}
    s_mul_i32 s9, s8, {2*18432}
    s_mul_i32 s{S_ST0}, s8, {4*147456}
    s_mul_i32 s8, s{S_J}, 9216
    s_add_u32 s{S_ST0}, s{S_ST0}, s8
    s_add_u32 s{S_ST1}, s{S_ST0}, {2*147456}
    s_add_u32 s8, s9, 18432
    s_mov_b32 s{S_IDX}, 0
    s_mov_b32 s{S_CNT}, 0
    s_mov_b32 s{S_COL}, s{S_COL0}
    s_add_u32 s{S_O3}, s{S_COL0}, 128
    s_add_u32 s{S_O2}, s{S_O3}, {288*9216}
    s_mov_b32 s{S_SP3}, {ST1}
    s_mov_b32 s{S_SC3}, {ST1}
    s_mov_b64 s[{S_A}:{S_A+1}], s[{S_WG}:{S_WG+1}]
    s_mov_b64 s[{S_A+2}:{S_A+3}], s[{S_WG+2}:{S_WG+3}]
    s_mov_b64 s[{S_B}:{S_B+1}], s[{S_WU}:{S_WU+1}]
    s_mov_b64 s[{S_B+2}:{S_B+3}], s[{S_WU+2}:{S_WU+3}]
    v_mov_b32 v{V_DC}, v{V_D1}
    v_mov_b32 v{V_DC3}, v{V_D1}
    s_waitcnt vmcnt(0)
    s_barrier
    """)
    for x in sig_ops(1): e(x)
    if d0 < 3:
        e(f"s_cmp_lg_u32 s{S_LAY}, 0\ns_cbranch_scc1 L_main_nod")
        for s in range(d0, 3): dma_now(first3[s])
        e("L_main_nod:")
    e(f"s_add_u32 s{S_NX}, s{S_PRG}, 1")
    spin(e, "xn", S_NX, V_FV)
    rstamp(e, 3, prof, 0); rstamp(e, 9, prof, 1)
    if d0 == 0: e("s_barrier")
    for k in range(18):
        for mt in range(2):
            e(f"buffer_load_dwordx4 {ar(8*k+4*mt)}, v{V_L16}, s[{S_XN}:{S_XN+3}], s{9-mt} offen offset:{(k%4)*1024} sc1")
        if k % 4 == 3: e("s_add_u32 s9, s9, 4096\ns_add_u32 s8, s8, 4096")
    for k in range(6):
        for x in frag_reads(0, k, LA + (k & 3), k >> 2): e(x)
    if not OPT['xw']: e("s_waitcnt vmcnt(0)")
    R = [LA, LAN]
    def p1_mf(ph):
        acc = G if ph < 2 else U
        def f_(f, mt, A):
            u, t = f >> 2, f & 3
            k = 9 * (ph & 1) + u
            c = acc + 8 * t + 4 * mt
            d = T + 8 * t + 4 * mt if (ph == 1 and u == 8) else c
            return mfma(d, A, ar(8 * k + 4 * mt), None if k == 0 else c)
        return f_
    na = OPT['ga'] // 4
    fd, burst = fin_sched(144, True, HB - 8)
    burst([0, 1], 76); burst([2, 3], 85); burst([4, 5], 125); burst([6, 7], 134)
    add(fd, 137, f"s_add_u32 s{S_IDX}, s{S_IDX}, 8")
    gf = split(fd, 2)
    uo = []
    for q in range(na): uo += chain(quad(T, q), V_T + 4 * (q & 1))
    uf = split(spread(uo, 3, 143), 2)
    def xwaits(ph):
        p = {}
        if not OPT['xw']: return p
        for u in range(9):
            k = 9 * ph + u
            nd = 9 * ph + sum(1 for s in DP1 if s < 8 * u)
            add(p, 8 * u, f"s_waitcnt vmcnt({36 - (2*k+2) + nd})")
        return p
    e(f"""
    .p2align 6
    L_main_p1:
    s_cmp_lg_u32 s{S_CNT}, 3
    s_cbranch_scc1 L_main_p1b
    s_and_b32 s8, s{S_J}, 1
    s_mul_i32 s8, s8, {512+64}
    s_add_u32 s{S_O2}, s{S_COL0}, 512
    s_sub_u32 s{S_O2}, s{S_O2}, s8
    s_mov_b32 s{S_O3}, s{S_WD0}
    s_mov_b32 s{S_SP3}, {ST2}
    s_mov_b32 s{S_SC3}, s{S_INC5}
    s_mov_b64 s[{S_A}:{S_A+1}], s[{S_WU}:{S_WU+1}]
    s_mov_b64 s[{S_B}:{S_B+1}], s[{S_WD}:{S_WD+1}]
    v_mov_b32 v{V_DC}, v{V_DH}
    v_mov_b32 v{V_DC3}, v{V_D2}
    L_main_p1b:
    """)
    stage(e, P1MAP, P1MAP, p1_mf(0), R[0], R[1], dma_list(S_WU, V_D1, add_o(f"s{S_COL}", 288 * 9216), ST1), DP1, gf[0], xwaits(0), 18)
    f1 = dict(gf[1]); f1[4] = f1.get(4, []) + [f"s_add_u32 s{S_COL}, s{S_COL}, 128", f"s_cmp_eq_u32 s{S_CNT}, 3", f"s_cselect_b32 s{S_COL}, s{S_O2}, s{S_COL}"]
    stage(e, P1MAP, P1MAP, p1_mf(1), R[1], R[0], dma_list(S_WG, V_DC, mov_o(f"s{S_COL}"), ST1), DP1, f1, xwaits(1), 18)
    stage(e, P1MAP, P1MAP, p1_mf(2), R[0], R[1], dma_list(S_A, V_DC, mov_o(f"s{S_O2}"), ST1), DP1, uf[0], {}, 18)
    f3 = dict(uf[1])
    f3[62] = f3.get(62, []) + [f"s_add_u32 s{S_O2}, s{S_O2}, 128", f"s_add_u32 s{S_O3}, s{S_O3}, 128"]
    f3[70] = f3.get(70, []) + [f"s_add_u32 s{S_CNT}, s{S_CNT}, 1"]
    f3[71] = f3.get(71, []) + [f"s_cmp_lt_u32 s{S_CNT}, 4"]
    stage(e, P1MAP, P1MAP, p1_mf(3), R[1], R[0], dma_list(S_B, V_DC3, mov_o(f"s{S_O3}"), f"s{S_SP3}", f"s{S_SC3}"), DP1, f3, {}, 18)
    e("s_cbranch_scc1 L_main_p1")
    def ph_mf(acc):
        def f_(f, mt, A):
            u, t = f >> 2, f & 3
            k = u + 9 * (t >> 1)
            c = acc + 8 * (t & 1) + 4 * mt
            d = T + 8 * (t & 1) + 4 * mt if (acc == G and u == 8 and t >= 2) else c
            return mfma(d, A, ar(8 * k + 4 * mt), None if (u == 0 and t < 2) else c)
        return f_
    wd_dma = lambda st: dma_list(S_WD, V_D2, add_o(f"s{S_WD0}", 128 * st), ST2, f"s{S_INC5}")
    ops = []
    for q in range(min(na, 4)): ops += fin_mul(q) + fin_cvt(q, HB + 24)
    for q in range(na, 4): ops += chain(quad(T, q), V_T + 4 * (q & 1)) + fin_mul(q) + fin_cvt(q, HB + 24)
    for q in range(4, 8): ops += (chain(quad(T, q), V_T + 4 * (q & 1)) if q >= na else []) + fin_mul(q) + fin_cvt(q, HB + 24)
    nA = sum(1 for x in ops)
    o2 = []
    for q in range(4): o2 += chain(quad(T, q), V_T + 4 * (q & 1))
    cut = (len(ops) + len(o2)) // 2
    hf0 = spread(ops[:cut], 3, 66)
    hf1 = spread(ops[cut:] + o2, 4, 71)
    stage(e, P1MAP, P1MAP, ph_mf(G), R[0], R[1], wd_dma(1), DP1, hf0, {}, 18)
    stage(e, P1MAP, P2MAP, ph_mf(U), R[1], R[0], wd_dma(2), DP1, hf1, {}, 18)
    rstamp(e, 4, prof, OPT['sl'])
    tr_ops = []
    for q in range(4): tr_ops += fin_mul(q)
    for q in range(4): tr_ops += fin_cvt(q, HB + 32)
    e(f"s_cmp_lg_u32 s{S_LAY}, 0\ns_cselect_b32 s{S_COL}, {BIG}, s{S_COL0}")
    def p2_mf(f, mt, A):
        t, k = f // 9, f % 9
        c = G + 8 * t + 4 * mt
        return mfma(c, A, q4(HB + 36 * mt + 4 * k), None if k == 0 else c)
    nxt = [dma_list(S_WG, V_D1, mov_o(f"s{S_COL}"), ST1), dma_list(S_WG, V_D1, add_o(f"s{S_COL}", 288 * 9216), ST1),
           dma_list(S_WU, V_D1, mov_o(f"s{S_COL}"), ST1)]
    DP2 = [13, 18, 23, 28, 33, 49, 52, 55, 57]
    FLP = OPT['flp']
    slow = []
    log = [(-2, s, 'dma') for s in DP1] + [(-1, s, 'dma') for s in DP1]
    pipe = not OPT['nopipe']
    for st in range(9):
        fl = spread(tr_ops, 2, 14) if st == 0 else {}
        def put(ops, s0):
            n = s0
            for x in ops:
                add(fl, n, x)
                if x.startswith("buffer"): log.append((st, n, 'st'))
                else: n += 1
        if st > 0: put(out_ops(2, 256 * st - 128), 3)
        put(out_ops(0, 256 * st), 39)
        for s in DP2: log.append((st, s, 'dma'))
        sg = st - LAG
        if pipe and st + 1 - LAG >= 0 and st < 8:
            add(fl, FLP, f"buffer_load_dword v{V_FV + (st & 1)}, v{V_FP}, s[{S_FL}:{S_FL+3}], 0 offen sc1"); log.append((st, FLP, 'fl'))
        need = [(st - 2, 71)]
        if pipe: need += [(st - 1, 12), (st - 1, FLP)]
        if OPT['tight']: need.append((st - 1, OPT['tight']))
        lim = max(need)
        vmn = sum(1 for (a, b, t) in log if (a, b) > lim and (a, b) < (st, 60))
        if pipe and st >= 2:
            so = sig_ops(2 + st - 2)
            add(fl, 60, so[0]); add(fl, 60, so[1]); add(fl, 61, so[2]); log.append((st, 61, 'sig'))
        if pipe and sg >= 0:
            add(fl, 61, f"s_add_u32 s{S_NX}, s{S_PRG}, {2 + sg}")
            add(fl, 62, f"v_cmp_gt_u32 vcc, s{S_NX}, v{V_FV + ((st - 1) & 1)}")
            add(fl, 63, f"s_cbranch_vccnz L_slow{st}\nL_back{st}:")
            slow.append(st)
            for i in range(4):
                pl = pload(sg, i)
                add(fl, 64 + 2 * i, pl[0]); add(fl, 64 + 2 * i, pl[1]); log.append((st, 64 + 2 * i, 'pl'))
        if st == 8 and pipe:
            add(fl, 71, f"buffer_load_dword v{V_FV}, v{V_FP}, s[{S_FL}:{S_FL+3}], 0 offen sc1")
        dm = wd_dma(st + 3) if st < 6 else nxt[st - 6]
        stage(e, P2MAP, P2MAP, p2_mf, R[st & 1], R[1 - (st & 1)], dm, DP2, fl, {}, min(vmn, 63), last=(st == 8))
    e("s_nop 7")
    for x in out_ops(2, 256 * 8 + 128): e(x)
    rstamp(e, 5, prof, OPT['sl'])
    e("""
    v_bfe_u32 v124, v0, 1, 3
    v_and_b32 v125, 1, v0
    v_lshlrev_b32 v125, 4, v125
    s_mov_b32 s8, 0x3f80
    v_lshlrev_b32 v125, v125, s8
    """)
    for i in range(8):
        e(f"v_cmp_eq_u32 vcc, {i}, v124\ns_nop 1\nv_cndmask_b32 v{SEL+i}, 0, v125, vcc")
    for t in range(4): e(f"v_swap_b32 v{LA+t}, v{LAN+t}")
    for i in range(10):
        unpack_lo(e, X + 2*i, XP + i); unpack_hi(e, X + 2*i + 1, XP + i)
    e("s_waitcnt vmcnt(0)\ns_barrier")
    for x in sig_ops(10): e(x)
    rstamp(e, 6, prof, OPT['sl'])
    done = max(0, 9 - LAG) if pipe else 0
    if pipe and done < 7:
        e(f"s_add_u32 s{S_NX}, s{S_PRG}, {2 + 6}\nv_cmp_gt_u32 vcc, s{S_NX}, v{V_FV}\ns_nop 1\ns_cbranch_vccz L_mid_ok")
        spin(e, "mid", S_NX, V_FV)
        e("L_mid_ok:")
        for sg in range(done, 7):
            for i in range(4):
                for x in pload(sg, i): e(x)
        for sg in range(done):
            for x in red_mfma(sg): e(x)
        done2 = 7
    else: done2 = done; done = 0
    e(f"s_add_u32 s{S_T}, s{S_PRG}, 10")
    spin(e, "fin", S_T, V_FV)
    for sg in range(done2, 9):
        for i in range(4):
            for x in pload(sg, i): e(x)
    for sg in range(done, done2):
        for x in red_mfma(sg): e(x)
    for sg in range(done2, 9):
        e(f"s_waitcnt vmcnt({4 * (8 - sg)})")
        for x in red_mfma(sg): e(x)
    e("s_nop 7")
    round20(e, DT, PK, Dd)
    for i in range(10): e(pk("add", X + 2*i, X + 2*i, Dd + 2*i))
    e(f"s_cmp_lg_u32 s{S_LAY}, 0\ns_cbranch_scc1 L_main_fin")
    round20(e, X, XP, X)
    rstamp(e, 7, prof)
    e(f"""
    s_mov_b32 s{S_LAY}, 1
    s_mov_b32 s{S_PRG}, 16
    s_add_u32 s{S_XN}, s{S_XN}, {WS_XN[1] - WS_XN[0]}
    s_addc_u32 s{S_XN+1}, s{S_XN+1}, 0
    s_add_u32 s{S_P}, s{S_P}, {WS_P[1] - WS_P[0]}
    s_addc_u32 s{S_P+1}, s{S_P+1}, 0
    s_branch L_main_gate
    """)
    for st in slow:
        e(f"L_slow{st}:")
        spin(e, f"s{st}", S_NX, V_FV + ((st - 1) & 1))
        e(f"s_branch L_back{st}")
    e("L_main_fin:")
    round20(e, X, XP, None)
    srd(e, S_MISC, S_OUT, 0, ACT)
    for p in range(5): e(f"buffer_store_dwordx2 {pr(XP+2*p)}, v{V_A if p < 4 else V_A4}, s[{S_MISC}:{S_MISC+3}], s{S_RP} offen offset:{256*p}")
    if prof:
        e("s_waitcnt vmcnt(0)")
        rstamp(e, 10, prof)
        e("s_waitcnt lgkmcnt(0)")
        srd(e, S_MISC, 10, WS_DBG + 3 * 65536, 1024 * 128)
        e(f"s_lshl_b32 s8, s2, 2\ns_add_u32 s8, s8, s{S_WV}\ns_lshl_b32 s8, s8, 7\nv_mov_b32 v1, s8")
        for i in range(11):
            e(f"v_mov_b32 v2, 0\nv_mov_b32 v3, s{76+2*i}\nbuffer_store_dwordx2 v[2:3], v1, s[{S_MISC}:{S_MISC+3}], 0 offen offset:{8*i}\ns_nop 1")
    e("L_main_end:\ns_endpgm")
    return dict(name=name, grid=256, block=256, lds=LDS_TOTAL, desc=kernel_desc(name, NV, NA, sgpr=102))
```

```python
from common import *
from k_ln import rowsum, YPAD
from k_ffn import C1, C2

WS_CNT = 120 * MiB + 65536
CNT_BYTES = 8192
WS_HX = [60 * MiB, 80 * MiB]
WS_P3 = [40 * MiB, 50 * MiB]
HXB = 256 * 73728
P3B = 4 * ACT
SPIN_MAX = 100000
LDS_Y = 4 * STAGE
LDS_TOTAL = LDS_Y + 72 * YPAD
BIG = 0x7f000000
WB = D * F * 2
OPT = dict(sleep=1, d0=1, xw=3, stf="sc1", ga=20, cyc=0, nogelu=0, nolds=0, nodma=0, nost=0, sl=0, la=18, even=1, nohx=0, bal=1)
S_WG, S_WU, S_WD, S_XN, S_P, S_FL, S_A, S_HX, S_MISC = 12, 16, 20, 24, 28, 32, 36, 40, 44
(S_WV, S_C1, S_WO, S_ST0, S_ST1, S_CNT, S_O, S_T, S_J, S_G, S_JJ, S_RP, S_INV, S_LAY, S_PB, S_COL, S_O2, S_O3,
 S_COL0, S_PRG, S_SPIN, S_NX, S_HS, S_HA, S_HB, S_HC, S_HO) = range(48, 75)
S_OUT = 6
TR1, TR2, D1, D2, V_DH = 1, 13, 16, 25, 34
V_ST, V_ST8, V_C2, V_L16, V_PL, V_FS, V_FP, V_FD, V_FV, V_FQ, V_A, V_A4, V_X0, V_X4, V_YG, V_TAB = range(35, 51)
V_T = 52
G, T, U, EX, HB, XP = 60, 92, 124, 156, 164, 236
STG = HB + 48
NV = 248
FB = 144
NA = 192
X, Dd, PK, TM, DT, SEL, MK, Y = 124, 92, 112, 144, 60, 80, 148, 164
ACC2 = [G + 4 * i for i in range(8)] + [T + 16 + 4 * i for i in range(4)] + [U + 16 + 4 * i for i in range(4)] + [EX, EX + 4]

def pr(a): return f"v[{a}:{a+1}]"
def pk(op, d, a, b, mod=""): return f"v_pk_{op}_f32 {pr(d)}, {pr(a)}, {pr(b)} {mod}".rstrip()
BC = "op_sel_hi:[1,0]"
NEG = "op_sel_hi:[1,0] neg_lo:[0,1] neg_hi:[0,1]"
def q4(a): return f"v[{a}:{a+3}]"
def mfma(Dr, A, B, C): return f"v_mfma_f32_16x16x32_bf16 {q4(Dr)}, {A}, {B}, " + ("0" if C is None else q4(C))
def add(d, i, x): d.setdefault(i, []).append(x)

def rstamp(e, i, prof, lay=None):
    if not prof: return
    op = "s_memtime" if OPT['cyc'] else "s_memrealtime"
    if lay is None: e(f"{op} s[{76+2*i}:{77+2*i}]")
    else: e(f"s_cmp_lg_u32 s{S_LAY}, {lay}\ns_cbranch_scc1 L_stp{i}\n{op} s[{76+2*i}:{77+2*i}]\nL_stp{i}:")

def round20(e, src, pkr, dst):
    for i in range(10): e(f"v_cvt_pk_bf16_f32 v{pkr+i}, v{src+2*i}, v{src+2*i+1}")
    if dst is not None:
        for i in range(10):
            unpack_lo(e, dst + 2*i, pkr + i); unpack_hi(e, dst + 2*i + 1, pkr + i)

def layernorm(e, unpack):
    T_ = TM
    e(pk("add", T_, X, X + 2)); e(pk("add", T_ + 2, X + 4, X + 6))
    for i in range(4, 10): e(pk("add", T_ + 2 * (i & 1), T_ + 2 * (i & 1), X + 2 * i))
    e(pk("add", T_, T_, T_ + 2))
    e(f"v_add_f32 v{T_}, v{T_}, v{T_+1}")
    rowsum(e, T_, T_ + 1)
    e(f"v_mul_f32 v{T_}, s{S_INV}, v{T_}")
    for i in range(10): e(pk("add", Dd + 2*i, X + 2*i, T_, NEG))
    for i in (8, 9): e(pk("mul", Dd + 2*i, Dd + 2*i, MK, BC))
    e(pk("mul", T_ + 2, Dd, Dd))
    for i in range(1, 10): e(f"v_pk_fma_f32 {pr(T_+2)}, {pr(Dd+2*i)}, {pr(Dd+2*i)}, {pr(T_+2)}")
    e(f"v_add_f32 v{T_+2}, v{T_+2}, v{T_+3}")
    rowsum(e, T_ + 2, T_ + 3)
    e(f"v_mul_f32 v{T_+2}, s{S_INV}, v{T_+2}")
    e(f"v_cvt_pk_bf16_f32 v{T_+1}, v{T_}, v{T_+2}")
    unpack_hi(e, T_ + 2, T_ + 1); unpack_lo(e, T_, T_ + 1)
    e(f"v_add_f32 v{T_+2}, 0x3727c5ac, v{T_+2}")
    e(f"v_cvt_pk_bf16_f32 v{T_+2}, v{T_+2}, v{T_+2}")
    unpack_hi(e, T_ + 2, T_ + 2)
    e(f"v_sqrt_f32 v{T_+2}, v{T_+2}")
    for i in range(10): e(pk("add", Dd + 2*i, X + 2*i, T_, NEG))
    e(f"v_cvt_pk_bf16_f32 v{T_+2}, v{T_+2}, v{T_+2}")
    unpack_hi(e, T_ + 2, T_ + 2)
    e(f"v_rcp_f32 v{T_+2}, v{T_+2}")
    round20(e, Dd, PK, Dd)
    for i in range(10): e(pk("mul", Dd + 2*i, Dd + 2*i, T_ + 2, BC))
    round20(e, Dd, PK, Dd if unpack else None)

def dma_list(srd_, vb, pre0, sreg, slot):
    L = []
    for n in range(9):
        pre = []
        if n == 0 and pre0: pre.append(pre0)
        if n % 4 == 0: pre.append(f"s_add_u32 m0, s{S_WO}, {slot*STAGE + n*1024}")
        L.append((pre, f"buffer_load_dwordx4 v{vb+n}, s[{srd_}:{srd_+3}], s{sreg} offen offset:{(n%4)*1024} lds"))
    return L

def rd1(slot, u, t, h):
    a = slot * STAGE + u * 4096 + h * 2048
    k = a // 49152
    return TR1 + 4 * k + t, a - k * 49152
def rd2(slot, kl, tau, h):
    a = slot * STAGE + kl * 9216
    k = a // 55296
    return TR2 + k, a - k * 55296 + h * 4608 + 32 * tau

def cost(x):
    if x.startswith(("v_exp", "v_rcp")): return 2
    return x.count("\n") + 1 - x.count(":\n") - (1 if x.endswith(":") else 0)

class Stage:
    def __init__(s, mf_of, rd, rdn, dmas=(), last=False):
        LAH = OPT['la']
        s.mf_of = mf_of; s.fl = {}; s.pre = {}; s.bar = 72 - LAH; s.vm = []
        for i in range(72):
            f2 = i + LAH; f, h = f2 >> 1, f2 & 1
            if f >= 36 and last: continue
            va, off = rd(f, h) if f < 36 else rdn(f - 36, h)
            d = FB + 4 * (f % 12) + 2 * h
            add(s.fl, i, f"ds_read_b64_tr_b16 a[{d}:{d+1}], v{va} offset:{off}")
        for g in range(6):
            n = LAH - 12
            if last and g == 5: n = 0
            add(s.pre, 12 * g, f"s_waitcnt lgkmcnt({n})")
        for L, pos in dmas:
            for (prs, d), p in zip(L, pos):
                for x in prs: add(s.fl, p - (6 if x.startswith("v_readlane") else 1), x)
                add(s.fl, p, d); s.vm.append((p, 'dma'))
    def put(s, i, x):
        add(s.fl, i, x)
        if x.startswith("buffer"): s.vm.append((i, 'x'))
    def barrier(s, vmn):
        add(s.pre, s.bar, f"s_waitcnt vmcnt({vmn})\ns_barrier")
    def fixed(s):
        c = [0] * 72
        for i in range(72):
            c[i] += sum(cost(x) for x in s.fl.get(i, []))
            if i > 0: c[i - 1] += sum(cost(x) for x in s.pre.get(i, []))
        return c
    def emit(s, e):
        for i in range(72):
            f = i >> 1
            a = FB + 4 * (f % 12)
            for x in s.pre.get(i, []): e(x)
            e(s.mf_of(f, i & 1, f"a[{a}:{a+3}]"))
            for x in s.fl.get(i, []):
                if OPT['nogelu'] and x.startswith("v_") and not x.startswith(("v_add_u32", "v_cmp", "v_mov", "v_readlane", "v_sub")): continue
                if OPT['nolds'] and x.startswith("ds_read"): continue
                if OPT['nodma'] and x.endswith(" lds"): continue
                if OPT['nost'] and x.startswith("buffer_store_dwordx"): continue
                e(x)

def place(stages, ops, lo, hi):
    c = sum((s.fixed() for s in stages), [])
    tot = sum(c[lo:hi]) + sum(cost(x) for x in ops)
    avg = tot / (hi - lo)
    cum = 0; k = 0; pos = []
    for i in range(lo, hi):
        cum += c[i]
        if OPT['bal']:
            while k < len(ops) and (cum + cost(ops[k]) * 0.5 <= (i - lo + 1) * avg or i == hi - 1):
                stages[i // 72].put(i % 72, ops[k]); cum += cost(ops[k]); pos.append(i); k += 1
        else:
            while k < len(ops) and k * (hi - lo) // len(ops) <= i - lo:
                stages[i // 72].put(i % 72, ops[k]); pos.append(i); k += 1
    return pos

DP = [3, 9, 15, 21, 27, 33, 39, 45, 51]

def chain(vals, tmp):
    o = []
    for k, v in enumerate(vals): o.append(f"v_mul_f32 v{tmp+k}, v{v}, v{v}")
    for k, v in enumerate(vals): o.append(f"v_fma_f32 v{tmp+k}, v{tmp+k}, v{V_C2}, s{S_C1}")
    for k, v in enumerate(vals): o.append(f"v_mul_f32 v{tmp+k}, v{tmp+k}, v{v}")
    for k, v in enumerate(vals): o.append(f"v_exp_f32 v{tmp+k}, v{tmp+k}")
    for k, v in enumerate(vals): o.append(f"v_add_f32 v{tmp+k}, 1.0, v{tmp+k}")
    for k, v in enumerate(vals): o.append(f"v_rcp_f32 v{tmp+k}, v{tmp+k}")
    for k, v in enumerate(vals): o.append(f"v_mul_f32 v{v}, v{v}, v{tmp+k}")
    return o
def quad(base, q): return [base + 4 * q + i for i in range(4)]
def fin_mul(q): return [f"v_mul_f32 v{U+4*q+i}, v{T+4*q+i}, v{U+4*q+i}" for i in range(4)]
def fin_cvt(q, hb):
    t, mt = q >> 1, q & 1
    return [f"v_cvt_pk_bf16_f32 v{hb + 8*(t>>1) + 4*mt + 2*(t&1) + h}, v{U+4*q+2*h}, v{U+4*q+2*h+1}" for h in range(2)]
def h_store(reg, n):
    return f"buffer_store_dwordx4 {q4(reg)}, v{V_L16}, s[{S_HX}:{S_HX+3}], s{S_HS} offen offset:{n*1024} sc1"
def fin_block(hb, nq=8):
    na = OPT['ga'] // 4
    ops = []
    for q in range(nq):
        if nq == 8 and q >= na: ops += chain(quad(T, q), V_T + 4 * (q & 1))
        ops += fin_mul(q) + fin_cvt(q, hb)
        if (q >> 1) & 1: ops.append(h_store(hb + 8 * (q >> 2) + 4 * (q & 1), 2 * (q >> 2) + (q & 1)))
    return ops

def spin(e, u, need, vaddr):
    e(f"""
    s_mov_b32 s{S_SPIN}, 0
    L_spin_{u}:
    buffer_load_dword v{V_FV}, v{vaddr}, s[{S_FL}:{S_FL+3}], 0 offen sc1
    s_add_u32 s{S_SPIN}, s{S_SPIN}, 1
    s_waitcnt vmcnt(0)
    v_cmp_gt_u32 vcc, s{need}, v{V_FV}
    s_cmp_ge_u32 s{S_SPIN}, {SPIN_MAX}
    s_cbranch_scc1 L_spun_{u}
    s_cbranch_vccz L_spun_{u}
    """)
    if OPT['sleep']: e(f"s_sleep {OPT['sleep']}")
    e(f"s_branch L_spin_{u}\nL_spun_{u}:")

def sig_ops(k):
    return [f"s_add_u32 s{S_T}, s{S_PRG}, {k}", f"v_mov_b32 v{V_FD}, s{S_T}",
            f"buffer_store_dword v{V_FD}, v{V_FS}, s[{S_FL}:{S_FL+3}], 0 offen sc1"]
FLAG_Q = f"buffer_load_dword v{V_FV}, v{V_FQ}, s[{S_FL}:{S_FL+3}], 0 offen sc1"

ENT = [(0, k) for k in range(9)] + [(d, k) for d in (1, 2, 3) for k in range(6)] + [(d, k) for d in (1, 2, 3) for k in (6, 7, 8)]
def h_reg(d, k, mt):
    if d == 0: return q4(HB + 8 * k + 4 * mt)
    if k < 6: return ar(48 * (d - 1) + 8 * k + 4 * mt)
    return q4(HB + 24 * (d - 1) + 8 * (k - 6) + 4 * mt)
def h_loads(d, ks, sbase):
    L = []; cur = None
    for k in ks:
        for mt in range(2):
            n = 2 * k + mt
            if n // 4 != cur:
                cur = n // 4
                L.append(f"s_add_u32 s{S_HO}, s{sbase}, {cur*4096}")
            L.append(f"buffer_load_dwordx4 {h_reg(d, k, mt)}, v{V_L16}, s[{S_HX}:{S_HX+3}], s{S_HO} offen offset:{(n%4)*1024} sc1")
    return L

def out_pair(p):
    L = []
    for mt in range(2):
        O = V_T + 4 * mt
        for h in range(2):
            a = ACC2[2 * (2 * p + h) + mt]
            L.append(f"v_cvt_pk_bf16_f32 v{O+2*h}, v{a}, v{a+1}")
            L.append(f"v_cvt_pk_bf16_f32 v{O+2*h+1}, v{a+2}, v{a+3}")
        L.append(f"buffer_store_dwordx4 {q4(O)}, v{V_ST}, s[{S_P}:{S_P+3}], s{S_ST0+mt} offen offset:{128*p} {OPT['stf']}".rstrip())
    return L
def out_single():
    L = []
    for mt in range(2):
        O = HB + 2 * mt; a = ACC2[16 + mt]
        L += [f"v_cvt_pk_bf16_f32 v{O}, v{a}, v{a+1}", f"v_cvt_pk_bf16_f32 v{O+1}, v{a+2}, v{a+3}"]
    for mt in range(2):
        L.append(f"buffer_store_dwordx2 {pr(HB+2*mt)}, v{V_ST8}, s[{S_P}:{S_P+3}], s{S_ST0+mt} offen {OPT['stf']}".rstrip())
    return L

def emit_main(e, name="main_kernel", prof=False):
    kernel_head(e, name)
    e(f"""
    s_cmp_ge_u32 s2, 256
    s_cbranch_scc1 L_main_end
    s_load_dwordx2 s[10:11], s[0:1], {KA['ws']}
    s_load_dwordx2 s[4:5], s[0:1], {KA['q']}
    s_load_dwordx4 s[36:39], s[0:1], {KA['wg']}
    s_load_dwordx4 s[40:43], s[0:1], {KA['wd']}
    """)
    rstamp(e, 0, prof)
    L_, R_, D_, B_, C_, A_, BG = 60, 61, 62, 63, 64, 65, 66
    t0, t1, t2, t3 = 67, 68, 69, 70
    e(f"""
    v_lshrrev_b32 v{t0}, 6, v0
    v_and_b32 v{L_}, 63, v0
    v_lshlrev_b32 v{V_L16}, 4, v{L_}
    v_readfirstlane_b32 s{S_WV}, v{t0}
    s_and_b32 s{S_J}, s2, 3
    s_lshl_b32 s{S_J}, s{S_J}, 2
    s_bfe_u32 s6, s2, 0x20003
    s_add_u32 s{S_J}, s{S_J}, s6
    s_lshr_b32 s{S_G}, s2, 5
    s_lshl_b32 s{S_G}, s{S_G}, 1
    s_bfe_u32 s6, s2, 0x10002
    s_add_u32 s{S_G}, s{S_G}, s6
    s_lshl_b32 s{S_JJ}, s{S_G}, 4
    s_add_u32 s{S_JJ}, s{S_JJ}, s{S_J}
    s_lshl_b32 s{S_RP}, s{S_JJ}, 2
    s_add_u32 s{S_RP}, s{S_RP}, s{S_WV}
    s_mul_i32 s{S_RP}, s{S_RP}, 2304
    v_and_b32 v{R_}, 1, v0
    v_bfe_u32 v{D_}, v0, 1, 2
    v_bfe_u32 v{B_}, v0, 3, 1
    v_bfe_u32 v{C_}, v0, 4, 1
    v_bfe_u32 v{A_}, v0, 5, 1
    v_mul_u32_u24 v{V_A}, 1152, v{R_}
    v_lshl_add_u32 v{V_A}, v{A_}, 7, v{V_A}
    v_lshl_add_u32 v{V_A}, v{B_}, 6, v{V_A}
    v_lshl_add_u32 v{V_A}, v{C_}, 5, v{V_A}
    v_lshl_add_u32 v{V_A}, v{D_}, 3, v{V_A}
    v_mov_b32 v{BG}, {BIG}
    v_cmp_gt_u32 vcc, 32, v{L_}
    v_lshlrev_b32 v{t0}, 4, v0
    s_mul_i32 s6, s{S_JJ}, 9216
    v_cndmask_b32 v{V_A4}, v{BG}, v{V_A}, vcc
    s_add_u32 s7, s6, 4096
    s_add_u32 s8, s6, 8192
    s_cmp_lg_u32 s{S_WV}, 0
    s_cselect_b32 s8, {BIG}, s8
    s_waitcnt lgkmcnt(0)
    """)
    YL = 72
    srd(e, S_MISC, 10, WS_YT, ACT); srd(e, S_P, 4, 0, ACT)
    e(f"""
    buffer_load_dwordx4 {q4(YL)}, v{t0}, s[{S_MISC}:{S_MISC+3}], s6 offen
    buffer_load_dwordx4 {q4(YL+4)}, v{t0}, s[{S_MISC}:{S_MISC+3}], s7 offen
    buffer_load_dwordx4 {q4(YL+8)}, v{t0}, s[{S_MISC}:{S_MISC+3}], s8 offen
    """)
    for p in range(5): e(f"buffer_load_dwordx2 {pr(XP+2*p)}, v{V_A if p < 4 else V_A4}, s[{S_P}:{S_P+3}], s{S_RP} offen offset:{256*p}")
    srd(e, S_WG, 36, 0, WB); srd(e, S_WU, 38, 0, WB); srd(e, S_WD, 40, 0, WB)
    e(f"""
    s_mov_b32 s{S_OUT}, s42
    s_mov_b32 s{S_OUT+1}, s43
    s_and_b32 s8, s{S_J}, 1
    s_mul_i32 s9, s{S_J}, 576
    s_lshl_b32 s{S_COL0}, s8, 6
    s_add_u32 s{S_COL0}, s{S_COL0}, s9
    s_mul_i32 s{S_WO}, s{S_WV}, 9216
    s_mul_i32 s9, s{S_WV}, 72
    v_lshrrev_b32 v{t0}, 3, v{L_}
    v_lshrrev_b32 v{t1}, 1, v{t0}
    v_xor_b32 v{t1}, v{t1}, v{D_}
    v_add_u32 v{t0}, s9, v{t0}
    v_lshlrev_b32 v{t2}, 5, v{t1}
    v_lshl_add_u32 v{t2}, v{R_}, 4, v{t2}
    v_mul_u32_u24 v{D1}, 9216, v{t0}
    v_add_u32 v{D1}, v{D1}, v{t2}
    v_lshrrev_b32 v{t1}, 1, v{t1}
    v_mul_u32_u24 v{V_DH}, {288*9216 - 64}, v{t1}
    """)
    for n in range(1, 9): e(f"v_add_u32 v{D1+n}, {n*8*9216 - (n%4)*1024}, v{D1}")
    first3 = [dma_list(S_WG, D1, None, S_COL0, 0), dma_list(S_WG, D1, f"s_add_u32 s{S_O}, s{S_COL0}, {288*9216}", S_O, 1),
              dma_list(S_WU, D1, None, S_COL0, 2)]
    def dma_now(L):
        for prs, d in L:
            for x in prs: e(x)
            if prs: e("s_nop 0")
            e(d)
    d0 = OPT['d0']
    for s in range(d0): dma_now(first3[s])
    srd(e, S_XN, 10, WS_XN[0], ACT); srd(e, S_P, 10, WS_P3[0], P3B); srd(e, S_FL, 10, WS_CNT, CNT_BYTES); srd(e, S_HX, 10, WS_HX[0], HXB)
    e(f"""
    s_lshl_b32 s8, s8, 1
    """)
    for n in range(9):
        e(f"""
        v_add_u32 v{t0}, {64*n}, v{L_}
        v_mul_u32_u24 v{t1}, 3641, v{t0}
        v_lshrrev_b32 v{t1}, 16, v{t1}
        v_mul_u32_u24 v{t2}, 18, v{t1}
        v_sub_u32 v{t0}, v{t0}, v{t2}
        v_add_u32 v{t0}, s8, v{t0}
        v_subrev_u32 v{t2}, 18, v{t0}
        v_min_u32 v{t0}, v{t0}, v{t2}
        v_mul_u32_u24 v{t1}, 1152, v{t1}
        v_lshl_add_u32 v{t1}, v{t0}, 4, v{t1}
        v_subrev_u32 v{D2+n}, {(n%4)*1024}, v{t1}
        """)
    e(f"""
    v_lshl_add_u32 v{t0}, v{L_}, 2, s{S_WV}
    v_subrev_u32 v{t1}, 9, v{t0}
    v_mul_u32_u24 v{t2}, 43, v{t1}
    v_lshrrev_b32 v{t2}, 8, v{t2}
    v_mul_u32_u24 v{t3}, 6, v{t2}
    v_sub_u32 v{t1}, v{t1}, v{t3}
    v_add_u32 v{t2}, 1, v{t2}
    v_cmp_gt_u32 vcc, 9, v{t0}
    v_subrev_u32 v71, 27, v{t0}
    v_mul_u32_u24 v84, 86, v71
    v_cndmask_b32 v{t1}, v{t1}, v{t0}, vcc
    v_cndmask_b32 v{t2}, v{t2}, 0, vcc
    v_lshrrev_b32 v84, 8, v84
    v_mul_u32_u24 v{t3}, 3, v84
    v_sub_u32 v71, v71, v{t3}
    v_cmp_lt_u32 vcc, 26, v{t0}
    v_add_u32 v71, 6, v71
    v_add_u32 v84, 1, v84
    v_cndmask_b32 v{t1}, v{t1}, v71, vcc
    v_cndmask_b32 v{t2}, v{t2}, v84, vcc
    v_add_u32 v{t2}, s{S_J}, v{t2}
    v_and_b32 v{t2}, 3, v{t2}
    s_and_b32 s9, s{S_J}, 12
    v_add_u32 v{t2}, s9, v{t2}
    v_and_b32 v{t3}, 1, v{t2}
    v_add_u32 v{t1}, v{t1}, v{t3}
    v_subrev_u32 v{t3}, 9, v{t1}
    v_min_u32 v{t1}, v{t1}, v{t3}
    v_mul_u32_u24 v{t2}, 9, v{t2}
    v_add_u32 v{t1}, v{t1}, v{t2}
    v_mul_u32_u24 v{t1}, {32*1152}, v{t1}
    s_and_b32 s9, s{S_J}, 3
    s_mul_i32 s9, s9, 288
    v_add_u32 v{V_TAB}, s9, v{t1}
    """)
    e(f"""
    s_mov_b32 s{S_INV}, 0x3ae38e39
    s_mov_b32 s{S_LAY}, 0
    s_mov_b32 s{S_PRG}, 0
    s_mov_b32 s{S_C1}, {hex(C1)}
    v_mov_b32 v{V_C2}, {hex(C2)}
    s_lshl_b32 s8, s{S_G}, 8
    v_and_b32 v{t0}, 15, v0
    v_lshl_add_u32 v{V_FP}, v{t0}, 2, s8
    s_and_b32 s9, s{S_J}, 12
    s_lshl_b32 s9, s9, 2
    s_add_u32 s9, s9, s8
    v_and_b32 v{t1}, 3, v0
    v_lshl_add_u32 v{V_FQ}, v{t1}, 2, s9
    s_lshl_b32 s9, s{S_J}, 2
    s_add_u32 s8, s8, s9
    v_mov_b32 v{t1}, s8
    v_cmp_eq_u32 vcc, 0, v0
    v_lshrrev_b32 v{t2}, 4, v{L_}
    v_mul_u32_u24 v{V_PL}, 9216, v{t2}
    v_cndmask_b32 v{V_FS}, v{BG}, v{t1}, vcc
    v_lshl_add_u32 v{V_PL}, v{t0}, 4, v{V_PL}
    v_mul_u32_u24 v{V_ST8}, {4*9216}, v{B_}
    v_mul_u32_u24 v{t1}, 2304, v{D_}
    v_add_u32 v{V_ST8}, v{V_ST8}, v{t1}
    v_lshl_add_u32 v{V_ST8}, v{R_}, 4, v{V_ST8}
    v_lshl_add_u32 v{V_ST8}, v{t2}, 5, v{V_ST8}
    s_and_b32 s8, s{S_J}, 3
    s_mul_i32 s9, s8, 9
    s_add_u32 s9, s9, 1
    s_lshr_b32 s9, s9, 1
    s_lshl_b32 s9, s9, 7
    v_add_u32 v{V_ST}, s9, v{V_ST8}
    s_lshr_b32 s9, s8, 1
    s_mul_i32 s9, s9, {9*128}
    s_and_b32 s8, s8, 1
    s_lshl_b32 s8, s8, 3
    s_add_u32 s9, s9, s8
    s_add_u32 s9, s9, {4*128}
    v_add_u32 v{V_ST8}, s9, v{V_ST8}
    v_bfe_u32 v{t1}, v0, 1, 3
    v_lshlrev_b32 v{V_X4}, 8, v{t1}
    v_lshl_add_u32 v{V_X4}, v{R_}, 4, v{V_X4}
    v_cmp_gt_u32 vcc, 16, v{L_}
    v_lshl_add_u32 v{V_X0}, v{C_}, 12, v{V_X4}
    v_lshl_add_u32 v{V_X0}, v{A_}, 11, v{V_X0}
    v_cndmask_b32 v{V_X4}, v{BG}, v{V_X4}, vcc
    v_lshrrev_b32 v{t1}, 2, v{L_}
    v_and_b32 v{t2}, 3, v0
    v_lshlrev_b32 v{t2}, 3, v{t2}
    v_mul_u32_u24 v{TR2}, 288, v{t1}
    v_add_u32 v{TR2}, v{TR2}, v{t2}
    v_add_u32 v{TR2+1}, 55296, v{TR2}
    v_add_u32 v{TR2+2}, {2*55296}, v{TR2}
    v_lshl_add_u32 v{t1}, v{t1}, 7, v{t2}
    v_bfe_u32 v{t2}, v0, 3, 2
    """)
    for t in range(4):
        e(f"v_xor_b32 v{t3}, {t}, v{t2}\nv_lshl_add_u32 v{TR1+t}, v{t3}, 5, v{t1}\nv_add_u32 v{TR1+4+t}, 49152, v{TR1+t}\nv_add_u32 v{TR1+8+t}, {2*49152}, v{TR1+t}")
    e(f"""
    v_lshrrev_b32 v{t0}, 3, v0
    v_mul_u32_u24 v{t0}, {YPAD}, v{t0}
    v_and_b32 v{t1}, 7, v0
    v_lshl_add_u32 v{t0}, v{t1}, 4, v{t0}
    v_add_u32 v{t0}, {LDS_Y}, v{t0}
    v_lshlrev_b32 v{t1}, 1, v{A_}
    v_add_u32 v{t1}, v{t1}, v{B_}
    v_lshl_add_u32 v{t1}, v{t1}, 1, v{C_}
    v_lshrrev_b32 v{t2}, 1, v{D_}
    v_lshl_add_u32 v{t1}, v{t1}, 1, v{t2}
    v_mul_u32_u24 v{t1}, {YPAD}, v{t1}
    v_and_b32 v{t2}, 1, v{D_}
    v_lshl_add_u32 v{t1}, v{t2}, 6, v{t1}
    v_lshl_add_u32 v{t1}, v{R_}, 1, v{t1}
    s_lshl_b32 s8, s{S_WV}, 2
    s_add_u32 s8, s8, {LDS_Y}
    v_add_u32 v{V_YG}, s8, v{t1}
    s_mul_i32 s{S_PB}, s{S_JJ}, {4*9216}
    s_mul_i32 s8, s{S_WV}, 2304
    s_add_u32 s{S_PB}, s{S_PB}, s8
    s_lshl_b32 s8, s{S_G}, 2
    s_add_u32 s8, s8, s{S_WV}
    s_mul_i32 s{S_ST0}, s8, {16*9216}
    s_lshr_b32 s9, s{S_J}, 2
    s_mul_i32 s9, s9, 9216
    s_add_u32 s{S_ST0}, s{S_ST0}, s9
    s_add_u32 s{S_ST1}, s{S_ST0}, {8*9216}
    """)
    for d, sr_ in ((1, S_HA), (2, S_HB), (3, S_HC)):
        e(f"""
        s_add_u32 s8, s{S_J}, {d}
        s_and_b32 s8, s8, 3
        s_and_b32 s9, s{S_JJ}, 0xffc
        s_add_u32 s8, s8, s9
        s_lshl_b32 s8, s8, 2
        s_add_u32 s8, s8, s{S_WV}
        s_mul_i32 s{sr_}, s8, 18432
        """)
    def y_gather():
        for i in range(16, 20): e(f"v_mov_b32 v{Y+i}, 0")
        for p in range(5):
            if p == 4: e("s_mov_b64 exec, 0xffffffff")
            for i in range(4): e(f"ds_read_u16 v{Y+4*p+i}, v{V_YG} offset:{p*16*YPAD + i*16}")
        e("s_mov_b64 exec, -1")
    e(f"""
    s_waitcnt vmcnt({5 + 9*d0})
    ds_write_b128 v{t0}, {q4(YL)}
    ds_write_b128 v{t0}, {q4(YL+4)} offset:{32*YPAD}
    s_cmp_lg_u32 s{S_WV}, 0
    s_cbranch_scc1 L_main_y3
    ds_write_b128 v{t0}, {q4(YL+8)} offset:{64*YPAD}
    L_main_y3:
    s_waitcnt lgkmcnt(0)
    s_barrier
    """)
    y_gather()
    e(f"s_waitcnt vmcnt({9*d0})")
    for i in range(10):
        unpack_lo(e, X + 2*i, XP + i); unpack_hi(e, X + 2*i + 1, XP + i)
    rstamp(e, 1, prof)
    e(f"""
    L_main_gate:
    v_and_b32 v{MK}, 32, v0
    v_cmp_eq_u32 vcc, 0, v{MK}
    s_nop 1
    v_cndmask_b32 v{MK}, 0, 1.0, vcc
    """)
    layernorm(e, True)
    e("s_waitcnt lgkmcnt(0)")
    for i in range(20): unpack_lo(e, Y + i, Y + i)
    for i in range(10): e(pk("mul", Dd + 2*i, Dd + 2*i, Y + 2*i))
    round20(e, Dd, PK, Dd)
    for i in range(10): e(pk("add", X + 2*i, X + 2*i, Dd + 2*i))
    round20(e, X, XP, X)
    layernorm(e, False)
    e(f"""
    s_lshr_b32 s8, s{S_JJ}, 1
    s_mul_i32 s8, s8, 18432
    s_and_b32 s9, s{S_JJ}, 1
    s_lshl_b32 s9, s9, 7
    s_add_u32 s8, s8, s9
    s_lshl_b32 s9, s{S_WV}, 5
    s_add_u32 s8, s8, s9
    s_add_u32 s9, s8, 8192
    s_add_u32 s{S_T}, s8, 16384
    """)
    for pp in range(3):
        e(f"v_permlane16_swap_b32 v{PK+4*pp}, v{PK+4*pp+2}\nv_permlane16_swap_b32 v{PK+4*pp+1}, v{PK+4*pp+3}")
    e(f"""
    buffer_store_dwordx4 {q4(PK)}, v{V_X0}, s[{S_XN}:{S_XN+3}], s8 offen sc1
    buffer_store_dwordx4 {q4(PK+4)}, v{V_X0}, s[{S_XN}:{S_XN+3}], s9 offen sc1
    buffer_store_dwordx4 {q4(PK+8)}, v{V_X4}, s[{S_XN}:{S_XN+3}], s{S_T} offen sc1
    """)
    rstamp(e, 2, prof, 0); rstamp(e, 8, prof, 1)
    e(f"""
    s_lshl_b32 s8, s{S_G}, 2
    s_add_u32 s8, s8, s{S_WV}
    s_mul_i32 s9, s8, {2*18432}
    s_add_u32 s8, s9, 18432
    s_mov_b32 s{S_CNT}, 0
    s_mov_b32 s{S_COL}, s{S_COL0}
    s_add_u32 s{S_O3}, s{S_COL0}, 128
    s_add_u32 s{S_O2}, s{S_O3}, {288*9216}
    s_mov_b32 s{S_HS}, {BIG}
    s_mov_b64 s[{S_A}:{S_A+1}], s[{S_WG}:{S_WG+1}]
    s_mov_b64 s[{S_A+2}:{S_A+3}], s[{S_WG+2}:{S_WG+3}]
    s_waitcnt vmcnt(0)
    s_barrier
    """)
    for x in sig_ops(1): e(x)
    if d0 < 3:
        e(f"s_cmp_lg_u32 s{S_LAY}, 0\ns_cbranch_scc1 L_main_nod")
        for s in range(d0, 3): dma_now(first3[s])
        e("L_main_nod:")
    e(f"s_add_u32 s{S_NX}, s{S_PRG}, 1")
    spin(e, "xn", S_NX, V_FP)
    rstamp(e, 3, prof, 0); rstamp(e, 9, prof, 1)
    if d0 == 0: e("s_barrier")
    for k in range(18):
        for mt in range(2):
            e(f"buffer_load_dwordx4 {ar(8*k+4*mt)}, v{V_L16}, s[{S_XN}:{S_XN+3}], s{9-mt} offen offset:{(k%4)*1024} sc1")
        if k % 4 == 3: e("s_add_u32 s9, s9, 4096\ns_add_u32 s8, s8, 4096")
    R1 = lambda slot: (lambda f, h: rd1(slot, f >> 2, f & 3, h))
    for f2 in range(OPT['la']):
        va, off = R1(0)(f2 >> 1, f2 & 1); d = FB + 2 * f2
        e(f"ds_read_b64_tr_b16 a[{d}:{d+1}], v{va} offset:{off}")
    if not OPT['xw']: e("s_waitcnt vmcnt(0)")
    def p1_mf(ph):
        acc = G if ph < 2 else U
        def f_(f, mt, A):
            u, t = f >> 2, f & 3
            k = 9 * (ph & 1) + u
            c = acc + 8 * t + 4 * mt
            d = T + 8 * t + 4 * mt if (ph == 1 and u == 8) else c
            return mfma(d, A, ar(8 * k + 4 * mt), None if k == 0 else c)
        return f_
    dm = [dma_list(S_WU, D1, f"s_add_u32 s{S_O}, s{S_COL}, {288*9216}", S_O, 3), dma_list(S_WG, D1, None, S_COL, 0),
          dma_list(S_A, D1, None, S_O2, 1), dma_list(S_WU, D1, None, S_O3, 2)]
    ST = [Stage(p1_mf(ph), R1(ph), R1((ph + 1) & 3), [(dm[ph], DP)]) for ph in range(4)]
    ST[0].put(56, f"s_add_u32 s{S_COL}, s{S_COL}, 128")
    ST[0].put(58, f"s_cmp_eq_u32 s{S_CNT}, 3\ns_cbranch_scc1 L_main_sw\nL_main_swb:")
    ST[3].put(56, f"s_add_u32 s{S_O2}, s{S_O2}, 128"); ST[3].put(57, f"s_add_u32 s{S_O3}, s{S_O3}, 128")
    so = [f"s_add_u32 s{S_T}, s{S_NX}, s{S_CNT}"] + sig_ops(0)[1:]
    ST[3].put(58, so[0]); ST[3].put(59, so[1]); ST[3].put(60, so[2])
    ST[3].put(62, f"s_cmp_eq_u32 s{S_CNT}, 0"); ST[3].put(62, f"s_cselect_b32 s{S_HS}, s{S_HO}, s{S_HS}"); ST[3].put(63, f"s_add_u32 s{S_HS}, s{S_HS}, 4096")
    ST[3].put(70, f"s_add_u32 s{S_CNT}, s{S_CNT}, 1"); ST[3].put(71, f"s_cmp_lt_u32 s{S_CNT}, 4")
    XW = {0: [], 1: list(range(9)), 3: [0, 3, 6], 2: [0, 2, 4, 6]}[OPT['xw']]
    for s in ST: add(s.pre, s.bar, "X\nX")
    for ph in range(2):
        for u in XW: add(ST[ph].pre, 8 * u, "X")
    na = OPT['ga'] // 4
    place(ST[:2], fin_block(STG), 2, 134)
    uo = []
    for q in range(na): uo += chain(quad(T, q), V_T + 4 * (q & 1))
    place(ST[2:], uo, 2, 144)
    for s in ST:
        for k in list(s.pre): s.pre[k] = [x for x in s.pre[k] if not x.startswith("X")]
    def vm_between(seq, a, b):
        return sum(1 for i, s in seq for (p, t) in s.vm if a < (i, p) < b)
    cyc = [(i, ST[i % 4]) for i in range(-4, 4)]
    for ph in range(4):
        lim = (ph - 2, DP[-1])
        if ph == 3: lim = max(lim, max((1, p) for p, t in ST[1].vm))
        ST[ph].barrier(vm_between(cyc, lim, (ph, ST[ph].bar - 1 + 0.5)))
    fwd = [(i, ST[i]) for i in range(2)]
    for ph in range(2):
        for n, u in enumerate(XW):
            ulast = (XW[n + 1] if n + 1 < len(XW) else 9) - 1
            k = 9 * ph + ulast
            ST[ph].pre[8 * u].insert(0, f"s_waitcnt vmcnt({36 - (2*k+2) + vm_between(fwd, (-1, 0), (ph, 8*u - 0.5))})")
    e(f"""
    s_lshl_b32 s{S_HO}, s{S_JJ}, 2
    s_add_u32 s{S_HO}, s{S_HO}, s{S_WV}
    s_mul_i32 s{S_HO}, s{S_HO}, 18432
    s_sub_u32 s{S_HO}, s{S_HO}, 4096
    s_add_u32 s{S_NX}, s{S_PRG}, 2
    .p2align 6
    L_main_p1:
    """)
    for s in ST: s.emit(e)
    e("s_cbranch_scc1 L_main_p1")
    def ph_mf(acc):
        def f_(f, mt, A):
            u, t = f >> 2, f & 3
            k = u + 9 * (t >> 1)
            c = acc + 8 * (t & 1) + 4 * mt
            d = T + 8 * (t & 1) + 4 * mt if (acc == G and u == 8 and t >= 2) else c
            return mfma(d, A, ar(8 * k + 4 * mt), None if (u == 0 and t < 2) else c)
        return f_
    slot2 = lambda sg: (sg + 3) & 3
    wd = lambda sg: dma_list(S_WD, D2, f"v_readlane_b32 s{S_O}, v{V_TAB}, {sg}", S_O, slot2(sg))
    wd2 = lambda sg: dma_list(S_WD, D2, f"v_readlane_b32 s{S_O2}, v{V_TAB}, {sg}", S_O2, slot2(sg))
    def fmap(sg):
        return (lambda f: (f & 3, f >> 2)) if sg == 8 else (lambda f: (f // 9, f % 9))
    R2 = lambda sg: (lambda f, h: rd2(slot2(sg), *fmap(sg)(f), h))
    def p2_mf(sg):
        def f_(f, mt, A):
            kl, tau = fmap(sg)(f)
            d, k = ENT[4 * sg + kl]
            c = ACC2[2 * tau + mt]
            return mfma(c, A, h_reg(d, k, mt), None if (sg == 0 and kl == 0) else c)
        return f_
    DPW = [7, 12, 17, 22, 27, 32, 38, 44, 50]
    nxt = [dma_list(S_WG, D1, None, S_COL, 0), dma_list(S_WG, D1, f"s_add_u32 s{S_O}, s{S_COL}, {288*9216}", S_O, 1), dma_list(S_WU, D1, None, S_COL, 2)]
    HG = Stage(ph_mf(G), R1(0), R1(1), [(wd(0), DPW)])
    HU = Stage(ph_mf(U), R1(1), R2(0), [(wd(1), DPW)])
    P2 = []
    for sg in range(9):
        if sg == 0: dms = [(wd(2), [7, 10, 13, 16, 19, 22, 25, 28, 30]), (wd2(3), [33, 35, 37, 39, 42, 44, 46, 48, 51])]
        elif sg < 6: dms = [(wd(sg + 3), DPW)]
        else: dms = [(nxt[sg - 6], DPW)]
        P2.append(Stage(p2_mf(sg), R2(sg), R2(sg + 1) if sg < 8 else None, dms, last=(sg == 8)))
    A_ = [HG, HU] + P2
    for s in A_: add(s.pre, s.bar, "X\nX")
    slow = []
    def check(st, i, k, tag):
        st.put(i, f"s_add_u32 s{S_NX}, s{S_PRG}, {k}")
        st.put(i + 1, f"v_cmp_gt_u32 vcc, s{S_NX}, v{V_FV}")
        st.put(i + 2, f"s_cbranch_vccnz L_slow{tag}\nL_back{tag}:")
        slow.append(tag)
    for n in range(9): HG.put(56 + n, f"v_sub_u32 v{D1+n}, v{D1+n}, v{V_DH}")
    HU.put(60, f"s_cmp_lg_u32 s{S_LAY}, 0"); HU.put(60, f"s_cselect_b32 s{S_COL}, {BIG}, s{S_COL0}")
    HU.put(0, FLAG_Q); check(HU, 55, 5, "e")
    own = h_loads(0, range(6), S_HS)
    own = [x.replace(f"s_add_u32 s{S_HO}, s{S_HS}, ", f"s_sub_u32 s{S_HO}, s{S_HS}, ") if x.startswith("s_add") else x for x in own]
    own = [(f"s_sub_u32 s{S_HO}, s{S_HS}, {12288 - int(x.split(',')[-1])}" if x.startswith("s_sub") else x) for x in own]
    for n, x in enumerate(own): HG.put(1 + 3 * n, x)
    ops = fin_block(STG)
    o2 = []
    for q in range(4): o2 += chain(quad(T, q), V_T + 4 * (q & 1))
    cut = (len(ops) + len(o2)) // 2
    place([HG], ops[:cut], 2, 66)
    place([HU], ops[cut:] + o2, 3, 72)
    tr_ops = [f"s_add_u32 s{S_HS}, s{S_HS}, 4096"] + fin_block(HB + 64, 4)
    place([P2[0]], tr_ops, 2, 30)
    hl = {1: S_HA, 2: S_HB, 3: S_HC}
    if not OPT['nohx']:
        place([P2[0]], h_loads(1, range(6), S_HA), 0, 52)
        place([P2[1]], h_loads(2, range(6), S_HB), 0, 52)
        place([P2[2]], h_loads(3, range(6), S_HC), 0, 52)
    for n, x in enumerate(sig_ops(6)): P2[1].put(55 + n, x)
    P2[3].put(0, FLAG_Q); check(P2[3], 55, 6, "l")
    if not OPT['nohx']:
        place([P2[3]], h_loads(1, (6, 7, 8), S_HA), 58, 72)
        place([P2[4]], h_loads(2, (6, 7, 8), S_HB) + h_loads(3, (6, 7, 8), S_HC), 0, 52)
    for p in range(3):
        n = 16 * p + 19
        for x in out_pair(p):
            P2[8].put(n, x)
            if not x.startswith("buffer"): n += 1
    for s in A_:
        for k in list(s.pre): s.pre[k] = [x for x in s.pre[k] if not x.startswith("X")]
    seq = [(-2, ST[2]), (-1, ST[3])] + list(enumerate(A_))
    def lastvm(i, pred=lambda p, t: True): return max((i, p) for p, t in dict(seq)[i].vm if pred(p, t))
    isdma = lambda p, t: t == 'dma'
    src = {0: lastvm(-2, isdma), 1: lastvm(0, isdma), 2: lastvm(1, isdma), 3: (2, 30)}
    for i in range(4, 10): src[i] = lastvm(i - 2, isdma)
    extra = {1: [(1, 0), lastvm(0)],
             3: [lastvm(2)],
             5: [(5, 0)],
             6: [lastvm(4)],
             8: [lastvm(6)]}
    for i, s in enumerate(A_):
        if i == 10: continue
        lim = max([src[i]] + extra.get(i, []))
        s.barrier(vm_between(seq, lim, (i, s.bar - 0.5)))
    for i, s in enumerate(A_):
        s.emit(e)
        if i == 1: rstamp(e, 4, prof, OPT['sl'])
    for x in out_pair(3): e(x)
    for x in out_single(): e(x)
    rstamp(e, 5, prof, OPT['sl'])
    e("""
    v_bfe_u32 v144, v0, 1, 3
    v_and_b32 v145, 1, v0
    v_lshlrev_b32 v145, 4, v145
    s_mov_b32 s8, 0x3f80
    v_lshlrev_b32 v145, v145, s8
    """)
    for i in range(8):
        e(f"v_cmp_eq_u32 vcc, {i}, v144\ns_nop 1\nv_cndmask_b32 v{SEL+i}, 0, v145, vcc")
    for i in range(10):
        unpack_lo(e, X + 2*i, XP + i); unpack_hi(e, X + 2*i + 1, XP + i)
    e("s_waitcnt vmcnt(0)\ns_barrier")
    for x in sig_ops(7): e(x)
    rstamp(e, 6, prof, OPT['sl'])
    y_gather()
    spin(e, "fin", S_T, V_FP)
    for sg in range(9):
        e(f"buffer_load_dwordx4 {ar(4*sg)}, v{V_PL}, s[{S_P}:{S_P+3}], s{S_PB} offen offset:{sg*256} sc1")
    for sg in range(9):
        d = DT + 4 * (sg >> 1)
        e(f"s_waitcnt vmcnt({8 - sg})")
        e(mfma(d, q4(SEL + 4 * (sg & 1)), ar(4 * sg), d if sg & 1 else None))
    e("s_nop 7")
    round20(e, DT, PK, Dd)
    for i in range(10): e(pk("add", X + 2*i, X + 2*i, Dd + 2*i))
    e(f"s_cmp_lg_u32 s{S_LAY}, 0\ns_cbranch_scc1 L_main_fin")
    round20(e, X, XP, X)
    rstamp(e, 7, prof)
    e(f"""
    s_mov_b32 s{S_LAY}, 1
    s_mov_b32 s{S_PRG}, 16
    s_add_u32 s{S_XN}, s{S_XN}, {WS_XN[1] - WS_XN[0]}
    s_addc_u32 s{S_XN+1}, s{S_XN+1}, 0
    s_add_u32 s{S_P}, s{S_P}, {WS_P3[1] - WS_P3[0]}
    s_addc_u32 s{S_P+1}, s{S_P+1}, 0
    s_add_u32 s{S_HX}, s{S_HX}, {WS_HX[1] - WS_HX[0]}
    s_addc_u32 s{S_HX+1}, s{S_HX+1}, 0
    s_branch L_main_gate
    L_main_sw:
    s_and_b32 s8, s{S_J}, 1
    s_mul_i32 s8, s8, {512+64}
    s_add_u32 s{S_O2}, s{S_COL0}, 512
    s_sub_u32 s{S_O2}, s{S_O2}, s8
    s_mov_b32 s{S_COL}, s{S_O2}
    s_mov_b32 s{S_O3}, {BIG}
    s_mov_b64 s[{S_A}:{S_A+1}], s[{S_WU}:{S_WU+1}]
    """)
    for n in range(9): e(f"v_add_u32 v{D1+n}, v{D1+n}, v{V_DH}")
    e("s_branch L_main_swb")
    for tag in slow:
        e(f"L_slow{tag}:")
        spin(e, f"s{tag}", S_NX, V_FQ)
        e(f"s_branch L_back{tag}")
    e("L_main_fin:")
    round20(e, X, XP, None)
    srd(e, S_MISC, S_OUT, 0, ACT)
    for p in range(5): e(f"buffer_store_dwordx2 {pr(XP+2*p)}, v{V_A if p < 4 else V_A4}, s[{S_MISC}:{S_MISC+3}], s{S_RP} offen offset:{256*p}")
    if prof:
        e("s_waitcnt vmcnt(0)")
        rstamp(e, 10, prof)
        e("s_waitcnt lgkmcnt(0)")
        srd(e, S_MISC, 10, WS_DBG + 3 * 65536, 1024 * 128)
        e(f"s_lshl_b32 s8, s2, 2\ns_add_u32 s8, s8, s{S_WV}\ns_lshl_b32 s8, s8, 7\nv_mov_b32 v1, s8")
        for i in range(11):
            e(f"v_mov_b32 v2, 0\nv_mov_b32 v3, s{76+2*i}\nbuffer_store_dwordx2 v[2:3], v1, s[{S_MISC}:{S_MISC+3}], 0 offen offset:{8*i}\ns_nop 1")
    e("L_main_end:\ns_endpgm")
    return dict(name=name, grid=256, block=256, lds=LDS_TOTAL, desc=kernel_desc(name, NV, NA, sgpr=102))
```

```python
import sys
from common import *
import k_prep, k_conv, k_ln, k_ffn, k_front, k_main, k_main2, k_main3, k_main4
OUT = "interleave_layers__ssm_conv_h3__geglu_ffn__prompt.s"
P = dict(loop=1, out=OUT, extra=0, prof=0, front=1, main=0)
MK = {1: k_main, 2: k_main2, 3: k_main3, 4: k_main4}[int(([a[5:] for a in sys.argv if a.startswith('main=')] + ['1'])[0]) or 1]
MOPT = MK.OPT
for a in sys.argv[1:]:
    k, v = a.split("=")
    if k in k_ffn.OPT: k_ffn.OPT[k] = v.replace("+", " ") if k == "stf" else int(v)
    elif k.startswith("m_"): MOPT[k[2:]] = v.replace("+", " ") if k.endswith("f") else int(v)
    elif k in k_front.OPT: k_front.OPT[k] = v.replace("+", " ") if k.endswith("stf") else int(v)
    else: P[k] = v if k == "out" else int(v)
e = Asm()
if P["main"]: k_front.OPT["nowd"] = 1
if P["main"] >= 2: k_front.OPT["nosh"] = 1
if P["front"]:
    fr = [k_front.emit_front_kernel(e, prof=bool(P["prof"]))]
else:
    fr = [k_prep.emit_prep_kernel(e), k_conv.emit_conv_kernel(e)]
if P["main"]:
    order = fr + [MK.emit_main(e, prof=bool(P["prof"]))]
else:
    ka = k_ln.emit_ln_kernel(e, "lna_kernel", "A")
    kb = k_ln.emit_ln_kernel(e, "lnb_kernel", "B")
    kf = k_ln.emit_ln_kernel(e, "fin_kernel", "F")
    f0, f1 = k_ffn.emit_ffn(e, loop=bool(P["loop"]), prof=bool(P["prof"]))
    order = fr + [ka, f0, kb, f1, kf]
allk = list(order)
if P["extra"]:
    kernel_head(e, "nop_kernel"); e("s_endpgm")
    kn = dict(name="nop_kernel", grid=1, block=64, lds=0, desc=kernel_desc("nop_kernel", 8))
    order += [kn] * P["extra"]; allk.append(kn)
ref = open(OUT + ".ref").read().split("\n")
hdr = [l for l in ref if l.startswith(";") and "@launch" not in l and "Override" not in l and "grid=ceil" not in l]
txt = "\n".join(hdr) + "\n"
for k in order:
    txt += f"; @launch kernel={k['name']} grid=({k['grid']},1,1) block=({k['block']},1,1) lds={k['lds']}\n"
txt += '.amdgcn_target "amdgcn-amd-amdhsa--gfx950"\n.text\n' + e.text() + "L_text_end:\n"
txt += '.section .rodata,"a"\n'
for k in allk: txt += ".p2align 6\n" + k["desc"]
open(P["out"], "w").write(txt)
print("written", P["out"], len(txt))
```

```python
from common import *

N_CONV = 144
N_SH = 112
CONV_LDS_W = 21760
UB, HB, HSTR = 0, 5120, 4160
NT_W1 = 1296
NT_WD = 648
OPT = dict(ystf="", wstf="", flagws=0, pf=0, late=1, nowd=0, nosh=0, pq=1, pw=1, pall=0, nonce=1, psl=0)
WS_CNT = 120 * MiB + 65536
WS_FLAG = 120 * MiB
FLAG_STRIDE = 256
SPIN_MAX = 200000

def wd_addr_setup(e, vl, vs, vkk, t1, t2):
    e(f"""
    v_and_b32 v{t1}, 7, v0
    v_bfe_u32 v{t2}, v0, 3, 2
    v_bfe_u32 v{vkk}, v0, 5, 1
    v_lshlrev_b32 v{vl}, 5, v{t2}
    v_lshl_add_u32 v{vl}, v{vkk}, 1, v{vl}
    v_mul_u32_u24 v{vl}, 1152, v{vl}
    v_lshl_add_u32 v{vl}, v{t1}, 4, v{vl}
    v_lshrrev_b32 v{vs}, 2, v{t1}
    v_mul_u32_u24 v{vs}, {18*1024}, v{vs}
    v_lshl_add_u32 v{vs}, v{t2}, 8, v{vs}
    v_and_b32 v{t1}, 3, v{t1}
    v_lshl_add_u32 v{vs}, v{t1}, 6, v{vs}
    """)

def wd_loads(e, sT, stp, sog, R, vl, srd_):
    e(f"""
    s_mul_i32 s{stp}, s{sT}, 7282
    s_lshr_b32 s{stp}, s{stp}, 16
    s_mul_i32 s35, s{stp}, 9
    s_sub_u32 s{sog}, s{sT}, s35
    s_lshr_b32 s34, s{stp}, 1
    s_lshl_b32 s34, s34, 7
    s_and_b32 s35, s{stp}, 1
    s_lshl_b32 s35, s35, 2
    s_add_u32 s34, s34, s35
    s_mul_i32 s34, s34, 1152
    s_lshl_b32 s35, s{sog}, 7
    s_add_u32 s34, s34, s35
    """)
    for r in range(4):
        e(f"buffer_load_dwordx4 v[{R+4*r}:{R+4*r+3}], v{vl}, s[{srd_}:{srd_+3}], s34 offen")
        e(f"buffer_load_dwordx4 v[{R+16+4*r}:{R+16+4*r+3}], v{vl}, s[{srd_}:{srd_+3}], s34 offen offset:1152")
        if r < 3: e("s_add_u32 s34, s34, 9216")

def wd_stores(e, stp, sog, R, vs, vkk, va, srd_, T0, wait):
    for kk in range(2):
        e(f"""
        s_lshl_b32 s35, s{stp}, 1
        s_add_u32 s35, s35, {kk}
        s_mul_i32 s36, s35, 7282
        s_lshr_b32 s36, s36, 16
        s_mul_i32 s36, s36, {W_SPLIT - 9 * 1024}
        s_lshl_b32 s35, s35, 10
        s_add_u32 s{37+kk}, s35, s36
        """)
    e(f"""
    s_sub_u32 s38, s38, s37
    v_mul_lo_u32 v{va}, v{vkk}, s38
    v_add_u32 v{va}, v{va}, v{vs}
    s_mul_i32 s35, s{sog}, {36 * 1024}
    s_add_u32 s37, s37, s35
    s_add_u32 s37, s37, {18 * STAGE}
    s_add_u32 s38, s37, {9 * 1024}
    """)
    if wait is not None: e(f"s_waitcnt vmcnt({wait})")
    def store(ec, reg):
        e(f"buffer_store_dwordx4 v[{reg}:{reg+3}], v{va}, s[{srd_}:{srd_+3}], s{37 + (ec >> 2)} offen offset:{(ec & 3) * 16} {OPT['wstf']}")
    transpose_store(e, R, store, T0)

def emit_conv(e, prof):
    e(f"""
    s_load_dwordx4 s[36:39], s[0:1], {KA['k']}
    s_load_dwordx2 s[8:9], s[0:1], {KA['sk']}
    s_load_dwordx4 s[4:7], s[0:1], {KA['h']}
    s_load_dwordx2 s[10:11], s[0:1], {KA['ws']}
    s_load_dwordx2 s[52:53], s[0:1], {KA['wd']}
    s_load_dwordx2 s[96:97], s[0:1], {KA['dbg']}
    """)
    if OPT['nonce']: e("s_memrealtime s[54:55]")
    stamp(e, 0, prof)
    e(f"""
    v_lshrrev_b32 v1, 6, v0
    v_and_b32 v2, 63, v0
    v_and_b32 v3, 15, v0
    v_readfirstlane_b32 s28, v1
    v_bfe_u32 v4, v0, 4, 2
    s_lshl_b32 s29, s3, 2
    v_lshlrev_b32 v5, 4, v2
    s_add_u32 s29, s29, s28
    s_mul_i32 s30, s28, {CONV_LDS_W}
    s_lshl_b32 s31, s29, 12
    s_lshr_b32 s32, s29, 6
    s_and_b32 s33, s29, 63
    s_mul_i32 s34, s33, {32*1152}
    s_lshl_b32 s35, s32, 7
    s_add_u32 s34, s34, s35
    v_mul_u32_u24 v6, 9216, v4
    v_lshl_add_u32 v6, v3, 3, v6
    v_add_u32 v6, s34, v6
    s_lshl_b32 s34, s32, 9
    v_lshl_add_u32 v7, v3, 5, s34
    v_subrev_u32 v10, 3456, v6
    v_subrev_u32 v11, 2304, v6
    v_subrev_u32 v12, 1152, v6
    v_add_u32 v13, 4608, v6
    s_waitcnt lgkmcnt(0)
    """)
    stamp(e, 1, prof)
    NV_ = 224
    if OPT['nonce']:
        e(f"""
        s_or_b32 s34, s2, s28
        s_cbranch_scc1 L_conv_notag
        """)
        srd(e, 56, 96, 0, 256)
        e(f"""
        v_mov_b32 v{NV_}, s54
        v_mov_b32 v{NV_+1}, s55
        v_mov_b32 v{NV_+2}, 0
        s_mov_b64 exec, 1
        buffer_store_dwordx2 v[{NV_}:{NV_+1}], v{NV_+2}, s[56:59], 0 offen sc1
        s_mov_b64 exec, -1
        L_conv_notag:
        """)
    srd(e, 16, 36, 0, ACT); srd(e, 20, 38, 0, ACT); srd(e, 24, 8, 0, D * 8)
    KR, VR, WL = 72, 96, 64
    e(f"buffer_load_dwordx4 v[{WL}:{WL+3}], v7, s[24:27], 0 offen")
    e(f"buffer_load_dwordx4 v[{WL+4}:{WL+7}], v7, s[24:27], 0 offen offset:16")
    for r in range(11):
        if r < 3: e(f"buffer_load_dwordx2 v[{KR+2*r}:{KR+2*r+1}], v{10+r}, s[16:19], 0 offen")
        else:
            rr = r - 3
            e(f"buffer_load_dwordx2 v[{KR+2*r}:{KR+2*r+1}], v{6 if rr < 4 else 13}, s[16:19], 0 offen offset:{(rr%4)*1152}")
            e(f"buffer_load_dwordx2 v[{VR+2*rr}:{VR+2*rr+1}], v{6 if rr < 4 else 13}, s[20:23], 0 offen offset:{(rr%4)*1152}")
    if OPT['nonce']:
        srd(e, 56, 96, 0, 256)
        e(f"""
        s_cmp_lg_u32 s28, 0
        s_cselect_b32 s34, 0x7f000000, 0
        v_mov_b32 v{NV_+2}, s34
        """)
    HW = 192
    WD = 224
    def h_loads():
        e("""
        s_add_u32 s12, s4, s31
        s_addc_u32 s13, s5, 0
        s_mov_b32 s14, 4096
        s_mov_b32 s15, 0x20000
        """)
        srd(e, 20, 6, 0, D * 2)
        HW = 192
        for r in range(4):
            e(f"buffer_load_dwordx4 v[{HW+6*r}:{HW+3+6*r}], v5, s[12:15], 0 offen offset:{1024*r}")
            e(f"buffer_load_dwordx2 v[{HW+4+6*r}:{HW+5+6*r}], v5, s[12:15], 0 offen offset:{1024*r+16}")
        e(f"""
        v_subrev_u32 v7, 48, v5
        s_lshl_b32 s34, s29, 1
        v_mov_b32 v9, s34
        buffer_load_dwordx2 v[{HW+28}:{HW+29}], v7, s[12:15], 0 offen
        buffer_load_ushort v8, v9, s[20:23], 0 offen
        """)
        if OPT['nonce']: e(f"buffer_load_dwordx2 v[{NV_}:{NV_+1}], v{NV_+2}, s[56:59], 0 offen sc1")
    def w_loads():
        WD = 224
        wd_addr_setup(e, 10, 15, 14, 11, 12)
        srd(e, 20, 52, 0, D * F * 2)
        wd_loads(e, 29, 42, 43, WD, 10, 20)
    if not OPT['late']: h_loads(); w_loads()
    NA = 0 if OPT['late'] else 18
    srd(e, 48, 10, WS_YT, ACT); srd(e, 16, 10, WS_KVT, ACT); srd(e, 24, 10, WS_W, 16 * W_SPLIT)
    if OPT['flagws'] or OPT['nonce']: srd(e, 92, 10, WS_FLAG, 4096)
    else: srd(e, 92, 96, 0, 256)
    e("s_mov_b32 s40, 0x05040100\ns_mov_b32 s41, 0x07060302")
    e(f"""
    s_lshl_b32 s34, s32, 18
    s_lshl_b32 s35, s33, 6
    s_add_u32 s44, s34, s35
    v_lshlrev_b32 v13, 14, v3
    v_lshl_add_u32 v13, v4, 4, v13
    """)
    WP = 156
    KF = 112
    RS = 16
    TT = 172
    def unk(r):
        for p in range(2):
            unpack_lo(e, KF + 4*r + 2*p, KR + 2*r + p); unpack_hi(e, KF + 4*r + 2*p + 1, KR + 2*r + p)
    stamp(e, 2, prof)
    e(f"s_waitcnt vmcnt({NA + 16})")
    stamp(e, 3, prof)
    for p in range(2):
        for t in range(4):
            for c in range(2):
                src = WL + 2 * (2 * p + c) + (t >> 1)
                (unpack_lo if t % 2 == 0 else unpack_hi)(e, WP + 8 * p + 2 * t + c, src)
    for r in range(3): unk(r)
    for r in range(8):
        e(f"s_waitcnt vmcnt({NA + 16 - 2*(r+1)})")
        if OPT['late'] and r == 2: h_loads(); NA += 10 + OPT['nonce']
        unk(r + 3)
        for p in range(2):
            for t in range(4):
                a = TT + 10*p + 2*t; k = KF + 4*(r+t) + 2*p; w = WP + 8*p + 2*(3-t)
                e(f"v_pk_mul_f32 v[{a}:{a+1}], v[{k}:{k+1}], v[{w}:{w+1}]")
        for t in range(4):
            for p in range(2):
                a = TT + 10*p + 2*t
                e(f"v_cvt_pk_bf16_f32 v{a}, v{a}, v{a+1}")
        for t in range(4):
            for p in range(2):
                a = TT + 10*p + 2*t
                unpack_hi(e, a + 1, a); unpack_lo(e, a, a)
        for p in range(2):
            a = TT + 10*p + 8
            unpack_lo(e, a, VR + 2*r + p); unpack_hi(e, a + 1, VR + 2*r + p)
        for t in range(1, 4):
            for p in range(2):
                a = TT + 10*p
                e(f"v_pk_add_f32 v[{a}:{a+1}], v[{a}:{a+1}], v[{a+2*t}:{a+2*t+1}]")
            for p in range(2):
                a = TT + 10*p
                e(f"v_cvt_pk_bf16_f32 v{a}, v{a}, v{a+1}")
            for p in range(2):
                a = TT + 10*p
                unpack_hi(e, a + 1, a); unpack_lo(e, a, a)
        for p in range(2):
            a = TT + 10*p; d = RS + 4*r + 2*p
            e(f"v_pk_mul_f32 v[{d}:{d+1}], v[{a}:{a+1}], v[{a+8}:{a+9}]")
    for c in range(4):
        for p in range(4):
            e(f"v_cvt_pk_bf16_f32 v{48+4*c+p}, v{RS+4*(7-2*p)+c}, v{RS+4*(6-2*p)+c}")
        e(f"buffer_store_dwordx4 v[{48+4*c}:{48+4*c+3}], v13, s[16:19], s44 offen sc1")
        if c < 3: e("s_add_u32 s44, s44, 4096")
    stamp(e, 4, prof)
    if OPT['late'] and not OPT['nowd']: w_loads()
    e(f"""
    v_mov_b32 v{HW+24}, 0
    v_mov_b32 v{HW+25}, 0
    v_mov_b32 v{HW+26}, 0
    v_mov_b32 v{HW+27}, 0
    v_mul_u32_u24 v9, 1280, v4
    v_lshl_add_u32 v9, v3, 4, v9
    v_add_u32 v9, s30, v9
    ds_write_b128 v9, v[{HW+24}:{HW+27}] offset:{UB}
    v_add_u32 v10, s30, v5
    s_waitcnt vmcnt({4 if OPT['nowd'] else 12})
    """)
    T = 72
    def copies(W, addr, off):
        e(f"ds_write_b128 v{addr}, v[{W}:{W+3}] offset:{HB + off}")
        for i in range(4): e(f"v_alignbit_b32 v{T+i}, v{W+i+1}, v{W+i}, 16")
        for i in range(4): e(f"v_mov_b32 v{T+4+i}, v{W+i+1}")
        for i in range(4): e(f"v_alignbit_b32 v{T+8+i}, v{W+i+2}, v{W+i+1}, 16")
        for a in range(1, 4):
            e(f"ds_write_b128 v{addr}, v[{T+4*(a-1)}:{T+4*(a-1)+3}] offset:{HB + a*HSTR + off}")
    for r in range(2):
        copies(HW + 6*r, 10, 1024*r + 64)
        T += 12
    fs = FLAG_STRIDE if OPT['flagws'] else 4
    if OPT['nonce']:
        assert OPT['late'] and OPT['nowd']
        e(f"""
        s_lshl_b32 s45, s32, 8
        s_and_b32 s46, s3, 15
        s_lshl_b32 s46, s46, 3
        s_add_u32 s46, s46, s45
        v_lshl_add_u32 v12, v3, 3, s45
        v_mov_b32 v11, s46
        s_mov_b32 s46, 0
        s_waitcnt vmcnt(0)
        s_barrier
        s_cmp_lg_u32 s28, 0
        s_cbranch_scc1 L_conv_nosig
        L_conv_tag:
        v_cmp_ne_u64 vcc, 0, v[{NV_}:{NV_+1}]
        s_add_u32 s46, s46, 1
        s_cmp_ge_u32 s46, {SPIN_MAX}
        s_cbranch_vccnz L_conv_tagok
        s_cbranch_scc1 L_conv_tagok
        buffer_load_dwordx2 v[{NV_}:{NV_+1}], v{NV_+2}, s[56:59], 0 offen sc1
        s_waitcnt vmcnt(0)
        s_branch L_conv_tag
        L_conv_tagok:
        s_mov_b64 exec, 1
        buffer_store_dwordx2 v[{NV_}:{NV_+1}], v11, s[92:95], 0 offen sc1
        s_mov_b64 exec, -1
        L_conv_nosig:
        """)
    else: e(f"""
    s_mul_i32 s45, s32, {fs}
    v_mov_b32 v11, 1
    v_mov_b32 v12, s45
    s_waitcnt vmcnt({8 if OPT['late'] and not OPT['nowd'] else 0})
    s_barrier
    s_cmp_lg_u32 s28, 0
    s_cbranch_scc1 L_conv_nosig
    s_mov_b64 exec, 1
    buffer_atomic_add v11, v12, s[92:95], 0 offen sc1
    s_mov_b64 exec, -1
    L_conv_nosig:
    """)
    stamp(e, 5, prof)
    for r in range(2, 4):
        copies(HW + 6*r, 10, 1024*r + 64)
        T += 12
    e("s_mov_b64 exec, 15")
    copies(HW + 24, 10, 0)
    e("s_mov_b64 exec, -1")
    if not OPT['nowd']: wd_stores(e, 42, 43, WD, 15, 14, 7, 24, 16, 0)
    e(f"""
    v_lshlrev_b32 v8, 16, v8
    v_add_u32 v11, 1, v3
    v_and_b32 v13, 3, v11
    v_sub_u32 v11, v11, v13
    v_lshlrev_b32 v14, 3, v4
    v_sub_u32 v11, v11, v14
    v_lshlrev_b32 v11, 1, v11
    v_mul_u32_u24 v13, {HSTR}, v13
    v_add3_u32 v11, v11, v13, s30
    v_add_u32 v11, {HB + 48}, v11
    v_and_b32 v14, 3, v2
    v_mul_u32_u24 v14, 1280, v14
    v_lshrrev_b32 v15, 2, v2
    v_lshl_add_u32 v14, v15, 4, v14
    v_add_u32 v14, s30, v14
    """)
    for i in range(32): e(f"v_mov_b32 v{112+i}, 0")
    if OPT['nonce']: e(f"""
    s_cmp_lg_u32 s28, 0
    s_cbranch_scc1 L_conv_polled
    s_mov_b32 s46, 0
    L_conv_poll:
    buffer_load_dwordx2 v[16:17], v12, s[92:95], 0 offen sc1
    s_add_u32 s46, s46, 1
    s_waitcnt vmcnt(0)
    v_cmp_ne_u64 vcc, v[16:17], v[{NV_}:{NV_+1}]
    s_cmp_ge_u32 s46, {SPIN_MAX}
    s_cbranch_vccz L_conv_polled
    s_cbranch_scc1 L_conv_polled
    {"s_sleep %d" % OPT['psl'] if OPT['psl'] else ""}
    s_branch L_conv_poll
    L_conv_polled:
    s_barrier
    """)
    else: e(f"""
    s_cmp_lg_u32 s28, 0
    s_cbranch_scc1 L_conv_polled
    s_mov_b32 s46, 0
    L_conv_poll:
    buffer_load_dword v13, v12, s[92:95], 0 offen sc1
    s_add_u32 s46, s46, 1
    s_waitcnt vmcnt(0)
    v_readfirstlane_b32 s47, v13
    s_cmp_ge_u32 s47, 16
    s_cbranch_scc1 L_conv_polled
    s_cmp_lt_u32 s46, {SPIN_MAX}
    s_cbranch_scc1 L_conv_poll
    L_conv_polled:
    s_barrier
    """)
    for i in range(4): e(f"buffer_load_dwordx4 v[{16+4*i}:{19+4*i}], v5, s[16:19], s31 offen offset:{1024*i} sc1")
    e("v_add_u32 v12, 240, v9")
    for i in range(4):
        e(f"s_waitcnt vmcnt({3-i})")
        e(f"ds_write_b128 v14, v[{16+4*i}:{19+4*i}] offset:{UB + 256 + 256*i}")
    FB = [16, 64]
    ACC = 112
    e("s_waitcnt lgkmcnt(0)")
    stamp(e, 6, prof)
    def acc(t, mt): return ACC + 4 * (2 * t + mt)
    def reads(buf, jo):
        L = []
        for b in range(4):
            r = FB[buf] + 32 + 4 * b
            L.append(f"ds_read_b128 v[{r}:{r+3}], v12 offset:{UB + 16 - 16*jo + 256*b}")
        for a in range(4):
            for mt in range(2):
                r = FB[buf] + 4 * (2 * a + mt)
                o = 64 * jo + 1024 * a + 32 * mt
                L.append(f"ds_read_b64 v[{r}:{r+1}], v11 offset:{o}")
                L.append(f"ds_read_b64 v[{r+2}:{r+3}], v11 offset:{o+8}")
        return L
    def step(buf, rd, extra=()):
        mf = [(t, a, mt) for a in range(4) for mt in range(2) for t in range(a, 4)]
        rd = list(rd); extra = list(extra)
        for i, (t, a, mt) in enumerate(mf):
            A = FB[buf] + 4 * (2 * a + mt); B = FB[buf] + 32 + 4 * (t - a); C = acc(t, mt)
            if i == 0: e("s_waitcnt lgkmcnt(0)")
            e(f"v_mfma_f32_16x16x32_bf16 v[{C}:{C+3}], v[{A}:{A+3}], v[{B}:{B+3}], v[{C}:{C+3}]")
            for _ in range(2):
                if rd: e(rd.pop(0))
            if not rd and extra: e(extra.pop(0))
        for x in extra: e(x)
    for r in reads(0, 0): e(r)
    e("s_mov_b32 s33, 0")
    e("L_conv_loop:")
    step(0, reads(1, 1), [f"v_add_u32 v11, 128, v11", "v_subrev_u32 v12, 32, v12"])
    step(1, reads(0, 0), ["s_add_u32 s33, s33, 1", "s_cmp_lt_u32 s33, 8"])
    e("s_cbranch_scc1 L_conv_loop")
    e(f"""
    s_waitcnt lgkmcnt(0)
    v_lshrrev_b32 v13, 1, v4
    v_mul_u32_u24 v13, 1280, v13
    v_lshl_add_u32 v13, v3, 4, v13
    v_and_b32 v14, 1, v4
    v_xor_b32 v14, 1, v14
    v_lshl_add_u32 v13, v14, 3, v13
    v_add_u32 v13, s30, v13
    """)
    U = 16
    for t in range(4):
        for mt in range(2):
            r = U + 2 * (2 * t + mt)
            e(f"ds_read_b64 v[{r}:{r+1}], v13 offset:{UB + 256 + mt*2560 + t*256}")
    e(f"""
    v_and_b32 v14, 1, v4
    v_lshrrev_b32 v15, 1, v4
    v_lshl_add_u32 v14, v14, 1, v15
    v_lshl_add_u32 v14, v3, 2, v14
    v_mul_u32_u24 v14, 9216, v14
    s_lshl_b32 s34, s29, 4
    v_mov_b32 v9, v8
    s_waitcnt lgkmcnt(0)
    """)
    T = 40
    for t in range(4):
        O = 64 + 4 * t
        for mt in range(2):
            r = U + 2 * (2 * t + mt); C = acc(t, mt)
            unpack_hi(e, T, r + 1); unpack_lo(e, T + 1, r + 1); unpack_hi(e, T + 2, r); unpack_lo(e, T + 3, r)
            e(f"v_cvt_pk_bf16_f32 v{T+6}, v{C}, v{C+1}")
            e(f"v_cvt_pk_bf16_f32 v{T+7}, v{C+2}, v{C+3}")
            for i in range(0, 4, 2): e(f"v_pk_mul_f32 v[{T+i}:{T+i+1}], v[{T+i}:{T+i+1}], v[8:9]")
            unpack_lo(e, T + 8, T + 6); unpack_hi(e, T + 9, T + 6); unpack_lo(e, T + 10, T + 7); unpack_hi(e, T + 11, T + 7)
            e(f"v_cvt_pk_bf16_f32 v{T+4}, v{T}, v{T+1}")
            e(f"v_cvt_pk_bf16_f32 v{T+5}, v{T+2}, v{T+3}")
            unpack_lo(e, T, T + 4); unpack_hi(e, T + 1, T + 4); unpack_lo(e, T + 2, T + 5); unpack_hi(e, T + 3, T + 5)
            for i in range(0, 4, 2): e(f"v_pk_add_f32 v[{T+i}:{T+i+1}], v[{T+i}:{T+i+1}], v[{T+8+i}:{T+9+i}]")
            e(f"v_cvt_pk_bf16_f32 v{O+2*mt}, v{T}, v{T+1}")
            e(f"v_cvt_pk_bf16_f32 v{O+2*mt+1}, v{T+2}, v{T+3}")
        e("s_nop 1")
        e(f"v_permlane16_swap_b32 v{O}, v{O+2}")
        e(f"v_permlane16_swap_b32 v{O+1}, v{O+3}")
        e(f"buffer_store_dwordx4 v[{O}:{O+3}], v14, s[48:51], s34 offen {OPT['ystf']}")
        if t < 3: e(f"s_add_u32 s34, s34, {64*9216}")
    if prof:
        e("s_waitcnt vmcnt(0)")
        stamp(e, 7, prof)
        stamp_flush(e, 8, prof, 2)
    e("s_endpgm")

def transpose_store(e, R, store, T0=16):
    for dw in range(4):
        T = T0 + 8 * (dw & 1)
        for h in range(2):
            for p in range(4):
                e(f"v_perm_b32 v{T+4*h+p}, v{R+4*(2*p+1)+dw}, v{R+4*(2*p)+dw}, s{40+h}")
        for h in range(2):
            store(2 * dw + h, T + 4 * h)

def emit_shuffle(e, prof):
    e(f"""
    s_load_dwordx4 s[4:7], s[0:1], {KA['wg']}
    s_load_dwordx2 s[8:9], s[0:1], {KA['wd']}
    s_load_dwordx2 s[10:11], s[0:1], {KA['ws']}
    """)
    stamp(e, 0, prof)
    if OPT['pf']: code_prefetch(e, "L_front_conv", "L_text_end", OPT['pf'], 12, "sh")
    e(f"""
    v_lshrrev_b32 v1, 6, v0
    v_and_b32 v2, 15, v0
    v_bfe_u32 v3, v0, 4, 2
    v_readfirstlane_b32 s28, v1
    s_lshl_b32 s29, s3, 2
    s_mov_b32 s40, 0x05040100
    s_mov_b32 s41, 0x07060302
    s_add_u32 s29, s29, s28
    v_mul_u32_u24 v4, 73728, v3
    v_lshl_add_u32 v4, v2, 4, v4
    v_and_b32 v5, 63, v0
    v_lshlrev_b32 v5, 4, v5
    """)
    wd_addr_setup(e, 9, 10, 8, 6, 7)
    e("s_waitcnt lgkmcnt(0)")
    stamp(e, 1, prof)
    srd(e, 12, 4, 0, D * F * 2); srd(e, 16, 6, 0, D * F * 2); srd(e, 20, 8, 0, D * F * 2); srd(e, 24, 10, WS_W, 16 * W_SPLIT)
    RB = 32
    BIG = 0x7f000000
    for i in range(3):
        sb, sk_, sm = 42 + 3 * i, 43 + 3 * i, 44 + 3 * i
        e(f"""
        s_add_u32 s30, s29, {448*i}
        s_cmp_ge_u32 s30, 648
        s_cselect_b32 s31, 648, 0
        s_cselect_b32 s{sm}, 1, 0
        s_sub_u32 s30, s30, s31
        s_mul_i32 s{sb}, s30, 3641
        s_lshr_b32 s{sb}, s{sb}, 16
        s_mul_i32 s31, s{sb}, 18
        s_sub_u32 s{sk_}, s30, s31
        s_mul_i32 s34, s{sk_}, 294912
        s_lshl_b32 s35, s{sb}, 8
        s_add_u32 s34, s34, s35
        """)
        if i == 2:
            e(f"s_cmp_ge_u32 s30, 648\ns_cselect_b32 s34, {BIG}, s34")
        if i == 1:
            e(f"s_cmp_eq_u32 s{sm}, 1\ns_cbranch_scc1 L_sh_m1")
            for sr_ in (12, 16):
                if sr_ == 16: e("L_sh_m1:")
                for r in range(8):
                    e(f"buffer_load_dwordx4 v[{RB+32*i+4*r}:{RB+32*i+4*r+3}], v4, s[{sr_}:{sr_+3}], s34 offen")
                    if r < 7: e("s_add_u32 s34, s34, 9216")
                if sr_ == 12: e("s_branch L_sh_m2")
            e("L_sh_m2:")
        else:
            sr_ = 12 if i == 0 else 16
            for r in range(8):
                e(f"buffer_load_dwordx4 v[{RB+32*i+4*r}:{RB+32*i+4*r+3}], v4, s[{sr_}:{sr_+3}], s34 offen")
                if r < 7: e("s_add_u32 s34, s34, 9216")
    R = RB + 96
    if not OPT['nowd']:
        e(f"""
        s_cmp_lt_u32 s29, 376
        s_cbranch_scc1 L_sh_nold
        s_add_u32 s30, s29, 200
        """)
        wd_loads(e, 30, 51, 52, R, 9, 20)
        e("s_branch L_sh_ld2\nL_sh_nold:")
        e(f"s_mov_b32 s34, {BIG}")
        for r in range(8): e(f"buffer_load_dword v{R+r}, v5, s[20:23], s34 offen")
        e("L_sh_ld2:")
    else:
        srd(e, 20, 10, WS_CNT, 8192)
        e(f"""
        s_lshl_b32 s34, s29, 10
        v_mov_b32 v{R}, 0
        v_mov_b32 v{R+1}, 0
        v_mov_b32 v{R+2}, 0
        v_mov_b32 v{R+3}, 0
        buffer_store_dwordx4 v[{R}:{R+3}], v5, s[20:23], s34 offen
        """)
    stamp(e, 2, prof)
    nld = 25 if OPT['nowd'] else 32
    nst = 0
    for i in range(3):
        sb, sk_, sm = 42 + 3 * i, 43 + 3 * i, 44 + 3 * i
        e(f"""
        s_mul_i32 s35, s{sk_}, 43
        s_lshr_b32 s35, s35, 8
        s_add_u32 s35, s35, s{sm}
        s_mul_i32 s36, s35, 6
        s_add_u32 s36, s36, s{sk_}
        s_lshl_b32 s36, s36, 10
        s_lshl_b32 s37, s{sb}, 3
        """)
        if i == 2: e(f"s_cmp_ge_u32 s{sb}, 36\ns_cbranch_scc1 L_sh_w1done")
        e(f"s_waitcnt vmcnt({min(63, nld - 8*(i+1) + nst)})")
        if i == 0: stamp(e, 3, prof)
        def store(ec, reg):
            e(f"""
            s_mul_i32 s38, s37, 3641
            s_lshr_b32 s38, s38, 16
            s_mul_i32 s38, s38, {W_SPLIT - 18 * STAGE}
            s_mul_i32 s39, s37, {STAGE}
            s_add_u32 s38, s38, s39
            s_add_u32 s38, s38, s36
            s_add_u32 s37, s37, 1
            buffer_store_dwordx4 v[{reg}:{reg+3}], v5, s[24:27], s38 offen {OPT['wstf']}
            """)
        transpose_store(e, RB + 32 * i, store)
        nst += 8
    e("L_sh_w1done:")
    stamp(e, 4, prof)
    if not OPT['nowd']:
        e("s_cmp_lt_u32 s29, 376\ns_cbranch_scc1 L_sh_done")
        wd_stores(e, 51, 52, RB + 96, 10, 8, 11, 24, 16, 16)
        e("L_sh_done:")
    stamp(e, 5, prof); stamp(e, 6, prof)
    if prof:
        e("s_waitcnt vmcnt(0)")
        stamp(e, 7, prof)
        stamp_flush(e, 8, prof, 2)
    e("s_endpgm")

def emit_helper(e, prof):
    e(f"""
    s_load_dwordx4 s[4:7], s[0:1], {KA['wg']}
    s_load_dwordx2 s[8:9], s[0:1], {KA['wd']}
    s_load_dwordx2 s[10:11], s[0:1], {KA['ws']}
    s_load_dwordx2 s[36:37], s[0:1], {KA['q']}
    """)
    stamp(e, 0, prof)
    if OPT['pf']: code_prefetch(e, "L_front_conv", "L_text_end", OPT['pf'], 12, "sh")
    e(f"""
    v_lshrrev_b32 v1, 6, v0
    v_and_b32 v5, 63, v0
    v_lshrrev_b32 v6, 3, v5
    v_readfirstlane_b32 s28, v1
    v_and_b32 v7, 7, v0
    v_mul_u32_u24 v6, 9216, v6
    v_lshl_add_u32 v6, v7, 4, v6
    v_lshlrev_b32 v5, 4, v5
    s_lshl_b32 s29, s3, 2
    s_add_u32 s29, s29, s28
    s_lshr_b32 s30, s3, 3
    s_lshl_b32 s30, s30, 2
    s_add_u32 s30, s30, s28
    v_mov_b32 v16, 0
    v_mov_b32 v17, 0
    v_mov_b32 v18, 0
    v_mov_b32 v19, 0
    s_lshl_b32 s34, s29, 10
    s_waitcnt lgkmcnt(0)
    """)
    stamp(e, 1, prof)
    srd(e, 12, 4, 0, D * F * 2); srd(e, 16, 6, 0, D * F * 2); srd(e, 20, 8, 0, D * F * 2); srd(e, 24, 10, WS_CNT, 8192); srd(e, 40, 36, 0, ACT)
    e("buffer_store_dwordx4 v[16:19], v5, s[24:27], s34 offen")
    e("s_cmp_ge_u32 s30, 32\ns_cbranch_scc1 L_hp_w")
    if OPT['pq']:
        e(f"""
        s_and_b32 s31, s3, 3
        s_lshl_b32 s31, s31, 2
        s_and_b32 s32, s30, 3
        s_add_u32 s31, s31, s32
        s_lshr_b32 s32, s30, 2
        s_lshl_b32 s32, s32, 1
        s_bfe_u32 s33, s3, 0x10002
        s_add_u32 s32, s32, s33
        s_lshl_b32 s32, s32, 4
        s_add_u32 s31, s31, s32
        s_mul_i32 s31, s31, 9216
        """)
        for n in range(9):
            e(f"buffer_load_dwordx4 v[{20+4*n}:{23+4*n}], v5, s[40:43], s31 offen offset:{(n%4)*1024}")
            if n % 4 == 3: e("s_add_u32 s31, s31, 4096")
    e("s_branch L_hp_r\nL_hp_w:")
    if OPT['pw']:
        e(f"""
        s_sub_u32 s31, s30, 32
        s_mul_i32 s32, s31, 43
        s_lshr_b32 s32, s32, 8
        s_mul_i32 s33, s32, 6
        s_sub_u32 s31, s31, s33
        s_and_b32 s33, s3, 3
        s_lshl_b32 s33, s33, 2
        s_add_u32 s32, s32, s33
        s_mul_i32 s33, s32, 576
        s_and_b32 s32, s32, 1
        s_lshl_b32 s32, s32, 6
        s_add_u32 s33, s33, s32
        s_cmp_ge_u32 s31, 4
        s_cselect_b32 s12, s16, s12
        s_cselect_b32 s13, s17, s13
        s_and_b32 s31, s31, 3
        s_mul_i32 s31, s31, {144*9216}
        s_add_u32 s33, s33, s31
        """)
        for n in range(18):
            e(f"buffer_load_dwordx4 v[{20+4*n}:{23+4*n}], v6, s[12:15], s33 offen\ns_add_u32 s33, s33, {8*9216}")
        srd(e, 12, 4, 0, D * F * 2)
    e("L_hp_r:")
    stamp(e, 2, prof)
    if OPT['pall']:
        e("s_lshl_b32 s31, s29, 10\ns_mov_b32 s32, 0\nL_hp_l:")
        for m in (12, 16, 20):
            e(f"s_waitcnt vmcnt({OPT['pall']-1})\nbuffer_load_dwordx4 v[20:23], v5, s[{m}:{m+3}], s31 offen")
        e(f"s_add_u32 s31, s31, {448*1024}\ns_add_u32 s32, s32, 1\ns_cmp_lt_u32 s32, 12\ns_cbranch_scc1 L_hp_l")
    for i in range(3, 7): stamp(e, i, prof)
    if prof:
        e("s_waitcnt vmcnt(0)")
        stamp(e, 7, prof)
        stamp_flush(e, 8, prof, 2)
    e("s_endpgm")

def emit_front_kernel(e, name="front_kernel", prof=False):
    kernel_head(e, name)
    e(f"""
    s_cmp_ge_u32 s2, 256
    s_cbranch_scc1 L_front_end
    s_and_b32 s4, s2, 7
    s_lshr_b32 s5, s2, 3
    s_mul_i32 s3, s4, 18
    s_add_u32 s3, s3, s5
    s_cmp_lt_u32 s5, 18
    s_cbranch_scc1 L_front_conv
    s_sub_u32 s3, s2, 144
    """)
    (emit_helper if OPT['nosh'] else emit_shuffle)(e, prof)
    e("L_front_conv:")
    emit_conv(e, prof)
    e("L_front_end:\ns_endpgm")
    return dict(name=name, grid=256, block=256, lds=4 * CONV_LDS_W, desc=kernel_desc(name, 256, sgpr=102))
```

```python
from common import *
from k_ln import rowsum, YPAD
from k_ffn import C1, C2

WS_CNT = 120 * MiB + 65536
CNT_BYTES = 8192
WS_HX = [60 * MiB, 80 * MiB]
WS_P3 = [40 * MiB, 50 * MiB]
HXB = 256 * 73728
P3B = 4 * ACT
SPIN_MAX = 100000
LDS_Y = 4 * STAGE
LDS_TOTAL = LDS_Y + 72 * YPAD
BIG = 0x7f000000
WB = D * F * 2
OPT = dict(sleep=1, d0=1, xw=3, stf="sc1", ga=20, cyc=0, nogelu=0, nolds=0, nodma=0, nost=0, sl=0, la=18, even=1, nohx=0, bal=1, fine=0)
S_WG, S_WU, S_WD, S_XN, S_P, S_FL, S_A, S_HX, S_MISC = 12, 16, 20, 24, 28, 32, 36, 40, 44
(S_WV, S_C1, S_WO, S_ST0, S_ST1, S_CNT, S_O, S_T, S_J, S_G, S_JJ, S_RP, S_INV, S_LAY, S_PB, S_COL, S_O2, S_O3,
 S_COL0, S_PRG, S_SPIN, S_NX, S_HS, S_HA, S_HB, S_HC, S_HO) = range(48, 75)
S_OUT = 6
TR1, TR2, D1, D2, V_DH = 1, 13, 16, 25, 34
V_ST, V_ST8, V_C2, V_L16, V_PL, V_FS, V_FP, V_FD, V_FV, V_FQ, V_A, V_A4, V_X0, V_X4, V_YG, V_TAB = range(35, 51)
V_T = 52
G, T, U, EX, HB, XP = 60, 92, 124, 156, 164, 236
STG = HB + 48
NV = 248
FB = 144
NA = 192
X, Dd, PK, TM, DT, SEL, MK, Y = 124, 92, 112, 144, 60, 80, 148, 164
ACC2 = [G + 4 * i for i in range(8)] + [T + 16 + 4 * i for i in range(4)] + [U + 16 + 4 * i for i in range(4)] + [EX, EX + 4]

def pr(a): return f"v[{a}:{a+1}]"
def pk(op, d, a, b, mod=""): return f"v_pk_{op}_f32 {pr(d)}, {pr(a)}, {pr(b)} {mod}".rstrip()
BC = "op_sel_hi:[1,0]"
NEG = "op_sel_hi:[1,0] neg_lo:[0,1] neg_hi:[0,1]"
def q4(a): return f"v[{a}:{a+3}]"
def mfma(Dr, A, B, C): return f"v_mfma_f32_16x16x32_bf16 {q4(Dr)}, {A}, {B}, " + ("0" if C is None else q4(C))
def add(d, i, x): d.setdefault(i, []).append(x)

def fstamp(e, i, prof, cnt=None):
    if not prof or not OPT['fine']: return
    op = "s_memtime" if OPT['cyc'] else "s_memrealtime"
    e(f"s_cmp_lg_u32 s{S_LAY}, {OPT['sl']}\ns_cbranch_scc1 L_fst{i}")
    if cnt is not None: e(f"s_cmp_lg_u32 s{S_CNT}, {cnt}\ns_cbranch_scc1 L_fst{i}")
    e(f"{op} s[{76+2*i}:{77+2*i}]\nL_fst{i}:")
def rstamp(e, i, prof, lay=None):
    if not prof: return
    if OPT['fine'] and i not in (0,): return
    op = "s_memtime" if OPT['cyc'] else "s_memrealtime"
    if lay is None: e(f"{op} s[{76+2*i}:{77+2*i}]")
    else: e(f"s_cmp_lg_u32 s{S_LAY}, {lay}\ns_cbranch_scc1 L_stp{i}\n{op} s[{76+2*i}:{77+2*i}]\nL_stp{i}:")

def round20(e, src, pkr, dst):
    for i in range(10): e(f"v_cvt_pk_bf16_f32 v{pkr+i}, v{src+2*i}, v{src+2*i+1}")
    if dst is not None:
        for i in range(10):
            unpack_lo(e, dst + 2*i, pkr + i); unpack_hi(e, dst + 2*i + 1, pkr + i)

def layernorm(e, unpack):
    T_ = TM
    e(pk("add", T_, X, X + 2)); e(pk("add", T_ + 2, X + 4, X + 6))
    for i in range(4, 10): e(pk("add", T_ + 2 * (i & 1), T_ + 2 * (i & 1), X + 2 * i))
    e(pk("add", T_, T_, T_ + 2))
    e(f"v_add_f32 v{T_}, v{T_}, v{T_+1}")
    rowsum(e, T_, T_ + 1)
    e(f"v_mul_f32 v{T_}, s{S_INV}, v{T_}")
    for i in range(10): e(pk("add", Dd + 2*i, X + 2*i, T_, NEG))
    for i in (8, 9): e(pk("mul", Dd + 2*i, Dd + 2*i, MK, BC))
    e(pk("mul", T_ + 2, Dd, Dd))
    for i in range(1, 10): e(f"v_pk_fma_f32 {pr(T_+2)}, {pr(Dd+2*i)}, {pr(Dd+2*i)}, {pr(T_+2)}")
    e(f"v_add_f32 v{T_+2}, v{T_+2}, v{T_+3}")
    rowsum(e, T_ + 2, T_ + 3)
    e(f"v_mul_f32 v{T_+2}, s{S_INV}, v{T_+2}")
    e(f"v_cvt_pk_bf16_f32 v{T_+1}, v{T_}, v{T_+2}")
    unpack_hi(e, T_ + 2, T_ + 1); unpack_lo(e, T_, T_ + 1)
    e(f"v_add_f32 v{T_+2}, 0x3727c5ac, v{T_+2}")
    e(f"v_cvt_pk_bf16_f32 v{T_+2}, v{T_+2}, v{T_+2}")
    unpack_hi(e, T_ + 2, T_ + 2)
    e(f"v_sqrt_f32 v{T_+2}, v{T_+2}")
    for i in range(10): e(pk("add", Dd + 2*i, X + 2*i, T_, NEG))
    e(f"v_cvt_pk_bf16_f32 v{T_+2}, v{T_+2}, v{T_+2}")
    unpack_hi(e, T_ + 2, T_ + 2)
    e(f"v_rcp_f32 v{T_+2}, v{T_+2}")
    round20(e, Dd, PK, Dd)
    for i in range(10): e(pk("mul", Dd + 2*i, Dd + 2*i, T_ + 2, BC))
    round20(e, Dd, PK, Dd if unpack else None)

def dma_list(srd_, vb, pre0, sreg, slot):
    L = []
    for n in range(9):
        pre = []
        if n == 0 and pre0: pre.append(pre0)
        if n % 4 == 0: pre.append(f"s_add_u32 m0, s{S_WO}, {slot*STAGE + n*1024}")
        L.append((pre, f"buffer_load_dwordx4 v{vb+n}, s[{srd_}:{srd_+3}], s{sreg} offen offset:{(n%4)*1024} lds"))
    return L

def rd1(slot, u, t, h):
    a = slot * STAGE + u * 4096 + h * 2048
    k = a // 49152
    return TR1 + 4 * k + t, a - k * 49152
def rd2(slot, kl, tau, h):
    a = slot * STAGE + kl * 9216
    k = a // 55296
    return TR2 + k, a - k * 55296 + h * 4608 + 32 * tau

def cost(x):
    if x.startswith(("v_exp", "v_rcp")): return 2
    return x.count("\n") + 1 - x.count(":\n") - (1 if x.endswith(":") else 0)

class Stage:
    def __init__(s, mf_of, rd, rdn, dmas=(), last=False):
        LAH = OPT['la']
        s.mf_of = mf_of; s.fl = {}; s.pre = {}; s.bar = 72 - LAH; s.vm = []
        for i in range(72):
            f2 = i + LAH; f, h = f2 >> 1, f2 & 1
            if f >= 36 and last: continue
            va, off = rd(f, h) if f < 36 else rdn(f - 36, h)
            d = FB + 4 * (f % 12) + 2 * h
            add(s.fl, i, f"ds_read_b64_tr_b16 a[{d}:{d+1}], v{va} offset:{off}")
        for g in range(6):
            n = LAH - 12
            if last and g == 5: n = 0
            add(s.pre, 12 * g, f"s_waitcnt lgkmcnt({n})")
        for L, pos in dmas:
            for (prs, d), p in zip(L, pos):
                for x in prs: add(s.fl, p - (6 if x.startswith("v_readlane") else 1), x)
                add(s.fl, p, d); s.vm.append((p, 'dma'))
    def put(s, i, x):
        add(s.fl, i, x)
        if x.startswith("buffer"): s.vm.append((i, 'x'))
    def barrier(s, vmn):
        add(s.pre, s.bar, f"s_waitcnt vmcnt({vmn})\ns_barrier")
    def fixed(s):
        c = [0] * 72
        for i in range(72):
            c[i] += sum(cost(x) for x in s.fl.get(i, []))
            if i > 0: c[i - 1] += sum(cost(x) for x in s.pre.get(i, []))
        return c
    def emit(s, e):
        for i in range(72):
            f = i >> 1
            a = FB + 4 * (f % 12)
            for x in s.pre.get(i, []): e(x)
            e(s.mf_of(f, i & 1, f"a[{a}:{a+3}]"))
            for x in s.fl.get(i, []):
                if OPT['nogelu'] and x.startswith("v_") and not x.startswith(("v_add_u32", "v_cmp", "v_mov", "v_readlane", "v_sub")): continue
                if OPT['nolds'] and x.startswith("ds_read"): continue
                if OPT['nodma'] and x.endswith(" lds"): continue
                if OPT['nost'] and x.startswith("buffer_store_dwordx"): continue
                e(x)

def place(stages, ops, lo, hi):
    c = sum((s.fixed() for s in stages), [])
    tot = sum(c[lo:hi]) + sum(cost(x) for x in ops)
    avg = tot / (hi - lo)
    cum = 0; k = 0; pos = []
    for i in range(lo, hi):
        cum += c[i]
        if OPT['bal']:
            while k < len(ops) and (cum + cost(ops[k]) * 0.5 <= (i - lo + 1) * avg or i == hi - 1):
                stages[i // 72].put(i % 72, ops[k]); cum += cost(ops[k]); pos.append(i); k += 1
        else:
            while k < len(ops) and k * (hi - lo) // len(ops) <= i - lo:
                stages[i // 72].put(i % 72, ops[k]); pos.append(i); k += 1
    return pos

DP = [3, 9, 15, 21, 27, 33, 39, 45, 51]

def chain(vals, tmp):
    o = []
    for k, v in enumerate(vals): o.append(f"v_mul_f32 v{tmp+k}, v{v}, v{v}")
    for k, v in enumerate(vals): o.append(f"v_fma_f32 v{tmp+k}, v{tmp+k}, v{V_C2}, s{S_C1}")
    for k, v in enumerate(vals): o.append(f"v_mul_f32 v{tmp+k}, v{tmp+k}, v{v}")
    for k, v in enumerate(vals): o.append(f"v_exp_f32 v{tmp+k}, v{tmp+k}")
    for k, v in enumerate(vals): o.append(f"v_add_f32 v{tmp+k}, 1.0, v{tmp+k}")
    for k, v in enumerate(vals): o.append(f"v_rcp_f32 v{tmp+k}, v{tmp+k}")
    for k, v in enumerate(vals): o.append(f"v_mul_f32 v{v}, v{v}, v{tmp+k}")
    return o
def quad(base, q): return [base + 4 * q + i for i in range(4)]
def fin_mul(q): return [f"v_mul_f32 v{U+4*q+i}, v{T+4*q+i}, v{U+4*q+i}" for i in range(4)]
def fin_cvt(q, hb):
    t, mt = q >> 1, q & 1
    return [f"v_cvt_pk_bf16_f32 v{hb + 8*(t>>1) + 4*mt + 2*(t&1) + h}, v{U+4*q+2*h}, v{U+4*q+2*h+1}" for h in range(2)]
def h_store(reg, n):
    return f"buffer_store_dwordx4 {q4(reg)}, v{V_L16}, s[{S_HX}:{S_HX+3}], s{S_HS} offen offset:{n*1024} sc1"
def fin_block(hb, nq=8):
    na = OPT['ga'] // 4
    ops = []
    for q in range(nq):
        if nq == 8 and q >= na: ops += chain(quad(T, q), V_T + 4 * (q & 1))
        ops += fin_mul(q) + fin_cvt(q, hb)
        if (q >> 1) & 1: ops.append(h_store(hb + 8 * (q >> 2) + 4 * (q & 1), 2 * (q >> 2) + (q & 1)))
    return ops

def spin(e, u, need, vaddr):
    e(f"""
    s_mov_b32 s{S_SPIN}, 0
    L_spin_{u}:
    buffer_load_dword v{V_FV}, v{vaddr}, s[{S_FL}:{S_FL+3}], 0 offen sc1
    s_add_u32 s{S_SPIN}, s{S_SPIN}, 1
    s_waitcnt vmcnt(0)
    v_cmp_gt_u32 vcc, s{need}, v{V_FV}
    s_cmp_ge_u32 s{S_SPIN}, {SPIN_MAX}
    s_cbranch_scc1 L_spun_{u}
    s_cbranch_vccz L_spun_{u}
    """)
    if OPT['sleep']: e(f"s_sleep {OPT['sleep']}")
    e(f"s_branch L_spin_{u}\nL_spun_{u}:")

def sig_ops(k):
    return [f"s_add_u32 s{S_T}, s{S_PRG}, {k}", f"v_mov_b32 v{V_FD}, s{S_T}",
            f"buffer_store_dword v{V_FD}, v{V_FS}, s[{S_FL}:{S_FL+3}], 0 offen sc1"]
FLAG_Q = f"buffer_load_dword v{V_FV}, v{V_FQ}, s[{S_FL}:{S_FL+3}], 0 offen sc1"

ENT = [(0, k) for k in range(9)] + [(d, k) for d in (1, 2, 3) for k in range(6)] + [(d, k) for d in (1, 2, 3) for k in (6, 7, 8)]
def h_reg(d, k, mt):
    if d == 0: return q4(HB + 8 * k + 4 * mt)
    if k < 6: return ar(48 * (d - 1) + 8 * k + 4 * mt)
    return q4(HB + 24 * (d - 1) + 8 * (k - 6) + 4 * mt)
def h_loads(d, ks, sbase):
    L = []; cur = None
    for k in ks:
        for mt in range(2):
            n = 2 * k + mt
            if n // 4 != cur:
                cur = n // 4
                L.append(f"s_add_u32 s{S_HO}, s{sbase}, {cur*4096}")
            L.append(f"buffer_load_dwordx4 {h_reg(d, k, mt)}, v{V_L16}, s[{S_HX}:{S_HX+3}], s{S_HO} offen offset:{(n%4)*1024} sc1")
    return L

def out_pair(p):
    L = []
    for mt in range(2):
        O = V_T + 4 * mt
        for h in range(2):
            a = ACC2[2 * (2 * p + h) + mt]
            L.append(f"v_cvt_pk_bf16_f32 v{O+2*h}, v{a}, v{a+1}")
            L.append(f"v_cvt_pk_bf16_f32 v{O+2*h+1}, v{a+2}, v{a+3}")
        L.append(f"buffer_store_dwordx4 {q4(O)}, v{V_ST}, s[{S_P}:{S_P+3}], s{S_ST0+mt} offen offset:{128*p} {OPT['stf']}".rstrip())
    return L
def out_single():
    L = []
    for mt in range(2):
        O = HB + 2 * mt; a = ACC2[16 + mt]
        L += [f"v_cvt_pk_bf16_f32 v{O}, v{a}, v{a+1}", f"v_cvt_pk_bf16_f32 v{O+1}, v{a+2}, v{a+3}"]
    for mt in range(2):
        L.append(f"buffer_store_dwordx2 {pr(HB+2*mt)}, v{V_ST8}, s[{S_P}:{S_P+3}], s{S_ST0+mt} offen {OPT['stf']}".rstrip())
    return L

def emit_main(e, name="main_kernel", prof=False):
    kernel_head(e, name)
    e(f"""
    s_cmp_ge_u32 s2, 256
    s_cbranch_scc1 L_main_end
    s_load_dwordx2 s[10:11], s[0:1], {KA['ws']}
    s_load_dwordx2 s[4:5], s[0:1], {KA['q']}
    s_load_dwordx4 s[36:39], s[0:1], {KA['wg']}
    s_load_dwordx4 s[40:43], s[0:1], {KA['wd']}
    """)
    rstamp(e, 0, prof)
    L_, R_, D_, B_, C_, A_, BG = 60, 61, 62, 63, 64, 65, 66
    t0, t1, t2, t3 = 67, 68, 69, 70
    e(f"""
    v_lshrrev_b32 v{t0}, 6, v0
    v_and_b32 v{L_}, 63, v0
    v_lshlrev_b32 v{V_L16}, 4, v{L_}
    v_readfirstlane_b32 s{S_WV}, v{t0}
    s_and_b32 s{S_J}, s2, 3
    s_lshl_b32 s{S_J}, s{S_J}, 2
    s_bfe_u32 s6, s2, 0x20003
    s_add_u32 s{S_J}, s{S_J}, s6
    s_lshr_b32 s{S_G}, s2, 5
    s_lshl_b32 s{S_G}, s{S_G}, 1
    s_bfe_u32 s6, s2, 0x10002
    s_add_u32 s{S_G}, s{S_G}, s6
    s_lshl_b32 s{S_JJ}, s{S_G}, 4
    s_add_u32 s{S_JJ}, s{S_JJ}, s{S_J}
    s_lshl_b32 s{S_RP}, s{S_JJ}, 2
    s_add_u32 s{S_RP}, s{S_RP}, s{S_WV}
    s_mul_i32 s{S_RP}, s{S_RP}, 2304
    v_and_b32 v{R_}, 1, v0
    v_bfe_u32 v{D_}, v0, 1, 2
    v_bfe_u32 v{B_}, v0, 3, 1
    v_bfe_u32 v{C_}, v0, 4, 1
    v_bfe_u32 v{A_}, v0, 5, 1
    v_mul_u32_u24 v{V_A}, 1152, v{R_}
    v_lshl_add_u32 v{V_A}, v{A_}, 7, v{V_A}
    v_lshl_add_u32 v{V_A}, v{B_}, 6, v{V_A}
    v_lshl_add_u32 v{V_A}, v{C_}, 5, v{V_A}
    v_lshl_add_u32 v{V_A}, v{D_}, 3, v{V_A}
    v_mov_b32 v{BG}, {BIG}
    v_cmp_gt_u32 vcc, 32, v{L_}
    v_lshlrev_b32 v{t0}, 4, v0
    s_mul_i32 s6, s{S_JJ}, 9216
    v_cndmask_b32 v{V_A4}, v{BG}, v{V_A}, vcc
    s_add_u32 s7, s6, 4096
    s_add_u32 s8, s6, 8192
    s_cmp_lg_u32 s{S_WV}, 0
    s_cselect_b32 s8, {BIG}, s8
    s_waitcnt lgkmcnt(0)
    """)
    YL = 72
    srd(e, S_MISC, 10, WS_YT, ACT); srd(e, S_P, 4, 0, ACT)
    e(f"""
    buffer_load_dwordx4 {q4(YL)}, v{t0}, s[{S_MISC}:{S_MISC+3}], s6 offen
    buffer_load_dwordx4 {q4(YL+4)}, v{t0}, s[{S_MISC}:{S_MISC+3}], s7 offen
    buffer_load_dwordx4 {q4(YL+8)}, v{t0}, s[{S_MISC}:{S_MISC+3}], s8 offen
    """)
    for p in range(5): e(f"buffer_load_dwordx2 {pr(XP+2*p)}, v{V_A if p < 4 else V_A4}, s[{S_P}:{S_P+3}], s{S_RP} offen offset:{256*p}")
    srd(e, S_WG, 36, 0, WB); srd(e, S_WU, 38, 0, WB); srd(e, S_WD, 40, 0, WB)
    e(f"""
    s_mov_b32 s{S_OUT}, s42
    s_mov_b32 s{S_OUT+1}, s43
    s_and_b32 s8, s{S_J}, 1
    s_mul_i32 s9, s{S_J}, 576
    s_lshl_b32 s{S_COL0}, s8, 6
    s_add_u32 s{S_COL0}, s{S_COL0}, s9
    s_mul_i32 s{S_WO}, s{S_WV}, 9216
    s_mul_i32 s9, s{S_WV}, 72
    v_lshrrev_b32 v{t0}, 3, v{L_}
    v_lshrrev_b32 v{t1}, 1, v{t0}
    v_xor_b32 v{t1}, v{t1}, v{D_}
    v_add_u32 v{t0}, s9, v{t0}
    v_lshlrev_b32 v{t2}, 5, v{t1}
    v_lshl_add_u32 v{t2}, v{R_}, 4, v{t2}
    v_mul_u32_u24 v{D1}, 9216, v{t0}
    v_add_u32 v{D1}, v{D1}, v{t2}
    v_lshrrev_b32 v{t1}, 1, v{t1}
    v_mul_u32_u24 v{V_DH}, {288*9216 - 64}, v{t1}
    """)
    for n in range(1, 9): e(f"v_add_u32 v{D1+n}, {n*8*9216 - (n%4)*1024}, v{D1}")
    first3 = [dma_list(S_WG, D1, None, S_COL0, 0), dma_list(S_WG, D1, f"s_add_u32 s{S_O}, s{S_COL0}, {288*9216}", S_O, 1),
              dma_list(S_WU, D1, None, S_COL0, 2)]
    def dma_now(L):
        for prs, d in L:
            for x in prs: e(x)
            if prs: e("s_nop 0")
            e(d)
    d0 = OPT['d0']
    for s in range(d0): dma_now(first3[s])
    srd(e, S_XN, 10, WS_XN[0], ACT); srd(e, S_P, 10, WS_P3[0], P3B); srd(e, S_FL, 10, WS_CNT, CNT_BYTES); srd(e, S_HX, 10, WS_HX[0], HXB)
    e(f"""
    s_lshl_b32 s8, s8, 1
    """)
    for n in range(9):
        e(f"""
        v_add_u32 v{t0}, {64*n}, v{L_}
        v_mul_u32_u24 v{t1}, 3641, v{t0}
        v_lshrrev_b32 v{t1}, 16, v{t1}
        v_mul_u32_u24 v{t2}, 18, v{t1}
        v_sub_u32 v{t0}, v{t0}, v{t2}
        v_add_u32 v{t0}, s8, v{t0}
        v_subrev_u32 v{t2}, 18, v{t0}
        v_min_u32 v{t0}, v{t0}, v{t2}
        v_mul_u32_u24 v{t1}, 1152, v{t1}
        v_lshl_add_u32 v{t1}, v{t0}, 4, v{t1}
        v_subrev_u32 v{D2+n}, {(n%4)*1024}, v{t1}
        """)
    e(f"""
    v_lshl_add_u32 v{t0}, v{L_}, 2, s{S_WV}
    v_subrev_u32 v{t1}, 9, v{t0}
    v_mul_u32_u24 v{t2}, 43, v{t1}
    v_lshrrev_b32 v{t2}, 8, v{t2}
    v_mul_u32_u24 v{t3}, 6, v{t2}
    v_sub_u32 v{t1}, v{t1}, v{t3}
    v_add_u32 v{t2}, 1, v{t2}
    v_cmp_gt_u32 vcc, 9, v{t0}
    v_subrev_u32 v71, 27, v{t0}
    v_mul_u32_u24 v84, 86, v71
    v_cndmask_b32 v{t1}, v{t1}, v{t0}, vcc
    v_cndmask_b32 v{t2}, v{t2}, 0, vcc
    v_lshrrev_b32 v84, 8, v84
    v_mul_u32_u24 v{t3}, 3, v84
    v_sub_u32 v71, v71, v{t3}
    v_cmp_lt_u32 vcc, 26, v{t0}
    v_add_u32 v71, 6, v71
    v_add_u32 v84, 1, v84
    v_cndmask_b32 v{t1}, v{t1}, v71, vcc
    v_cndmask_b32 v{t2}, v{t2}, v84, vcc
    v_add_u32 v{t2}, s{S_J}, v{t2}
    v_and_b32 v{t2}, 3, v{t2}
    s_and_b32 s9, s{S_J}, 12
    v_add_u32 v{t2}, s9, v{t2}
    v_and_b32 v{t3}, 1, v{t2}
    v_add_u32 v{t1}, v{t1}, v{t3}
    v_subrev_u32 v{t3}, 9, v{t1}
    v_min_u32 v{t1}, v{t1}, v{t3}
    v_mul_u32_u24 v{t2}, 9, v{t2}
    v_add_u32 v{t1}, v{t1}, v{t2}
    v_mul_u32_u24 v{t1}, {32*1152}, v{t1}
    s_and_b32 s9, s{S_J}, 3
    s_mul_i32 s9, s9, 288
    v_add_u32 v{V_TAB}, s9, v{t1}
    """)
    e(f"""
    s_mov_b32 s{S_INV}, 0x3ae38e39
    s_mov_b32 s{S_LAY}, 0
    s_mov_b32 s{S_PRG}, 0
    s_mov_b32 s{S_C1}, {hex(C1)}
    v_mov_b32 v{V_C2}, {hex(C2)}
    s_lshl_b32 s8, s{S_G}, 8
    v_and_b32 v{t0}, 15, v0
    v_lshl_add_u32 v{V_FP}, v{t0}, 2, s8
    s_and_b32 s9, s{S_J}, 12
    s_lshl_b32 s9, s9, 2
    s_add_u32 s9, s9, s8
    v_and_b32 v{t1}, 3, v0
    v_lshl_add_u32 v{V_FQ}, v{t1}, 2, s9
    s_lshl_b32 s9, s{S_J}, 2
    s_add_u32 s8, s8, s9
    v_mov_b32 v{t1}, s8
    v_cmp_eq_u32 vcc, 0, v0
    v_lshrrev_b32 v{t2}, 4, v{L_}
    v_mul_u32_u24 v{V_PL}, 9216, v{t2}
    v_cndmask_b32 v{V_FS}, v{BG}, v{t1}, vcc
    v_lshl_add_u32 v{V_PL}, v{t0}, 4, v{V_PL}
    v_mul_u32_u24 v{V_ST8}, {4*9216}, v{B_}
    v_mul_u32_u24 v{t1}, 2304, v{D_}
    v_add_u32 v{V_ST8}, v{V_ST8}, v{t1}
    v_lshl_add_u32 v{V_ST8}, v{R_}, 4, v{V_ST8}
    v_lshl_add_u32 v{V_ST8}, v{t2}, 5, v{V_ST8}
    s_and_b32 s8, s{S_J}, 3
    s_mul_i32 s9, s8, 9
    s_add_u32 s9, s9, 1
    s_lshr_b32 s9, s9, 1
    s_lshl_b32 s9, s9, 7
    v_add_u32 v{V_ST}, s9, v{V_ST8}
    s_lshr_b32 s9, s8, 1
    s_mul_i32 s9, s9, {9*128}
    s_and_b32 s8, s8, 1
    s_lshl_b32 s8, s8, 3
    s_add_u32 s9, s9, s8
    s_add_u32 s9, s9, {4*128}
    v_add_u32 v{V_ST8}, s9, v{V_ST8}
    v_bfe_u32 v{t1}, v0, 1, 3
    v_lshlrev_b32 v{V_X4}, 8, v{t1}
    v_lshl_add_u32 v{V_X4}, v{R_}, 4, v{V_X4}
    v_cmp_gt_u32 vcc, 16, v{L_}
    v_lshl_add_u32 v{V_X0}, v{C_}, 12, v{V_X4}
    v_lshl_add_u32 v{V_X0}, v{A_}, 11, v{V_X0}
    v_cndmask_b32 v{V_X4}, v{BG}, v{V_X4}, vcc
    v_lshrrev_b32 v{t1}, 2, v{L_}
    v_and_b32 v{t2}, 3, v0
    v_lshlrev_b32 v{t2}, 3, v{t2}
    v_mul_u32_u24 v{TR2}, 288, v{t1}
    v_add_u32 v{TR2}, v{TR2}, v{t2}
    v_add_u32 v{TR2+1}, 55296, v{TR2}
    v_add_u32 v{TR2+2}, {2*55296}, v{TR2}
    v_lshl_add_u32 v{t1}, v{t1}, 7, v{t2}
    v_bfe_u32 v{t2}, v0, 3, 2
    """)
    for t in range(4):
        e(f"v_xor_b32 v{t3}, {t}, v{t2}\nv_lshl_add_u32 v{TR1+t}, v{t3}, 5, v{t1}\nv_add_u32 v{TR1+4+t}, 49152, v{TR1+t}\nv_add_u32 v{TR1+8+t}, {2*49152}, v{TR1+t}")
    e(f"""
    v_lshrrev_b32 v{t0}, 3, v0
    v_mul_u32_u24 v{t0}, {YPAD}, v{t0}
    v_and_b32 v{t1}, 7, v0
    v_lshl_add_u32 v{t0}, v{t1}, 4, v{t0}
    v_add_u32 v{t0}, {LDS_Y}, v{t0}
    v_lshlrev_b32 v{t1}, 1, v{A_}
    v_add_u32 v{t1}, v{t1}, v{B_}
    v_lshl_add_u32 v{t1}, v{t1}, 1, v{C_}
    v_lshrrev_b32 v{t2}, 1, v{D_}
    v_lshl_add_u32 v{t1}, v{t1}, 1, v{t2}
    v_mul_u32_u24 v{t1}, {YPAD}, v{t1}
    v_and_b32 v{t2}, 1, v{D_}
    v_lshl_add_u32 v{t1}, v{t2}, 6, v{t1}
    v_lshl_add_u32 v{t1}, v{R_}, 1, v{t1}
    s_lshl_b32 s8, s{S_WV}, 2
    s_add_u32 s8, s8, {LDS_Y}
    v_add_u32 v{V_YG}, s8, v{t1}
    s_mul_i32 s{S_PB}, s{S_JJ}, {4*9216}
    s_mul_i32 s8, s{S_WV}, 2304
    s_add_u32 s{S_PB}, s{S_PB}, s8
    s_lshl_b32 s8, s{S_G}, 2
    s_add_u32 s8, s8, s{S_WV}
    s_mul_i32 s{S_ST0}, s8, {16*9216}
    s_lshr_b32 s9, s{S_J}, 2
    s_mul_i32 s9, s9, 9216
    s_add_u32 s{S_ST0}, s{S_ST0}, s9
    s_add_u32 s{S_ST1}, s{S_ST0}, {8*9216}
    """)
    for d, sr_ in ((1, S_HA), (2, S_HB), (3, S_HC)):
        e(f"""
        s_add_u32 s8, s{S_J}, {d}
        s_and_b32 s8, s8, 3
        s_and_b32 s9, s{S_JJ}, 0xffc
        s_add_u32 s8, s8, s9
        s_lshl_b32 s8, s8, 2
        s_add_u32 s8, s8, s{S_WV}
        s_mul_i32 s{sr_}, s8, 18432
        """)
    def y_gather():
        for i in range(16, 20): e(f"v_mov_b32 v{Y+i}, 0")
        for p in range(5):
            if p == 4: e("s_mov_b64 exec, 0xffffffff")
            for i in range(4): e(f"ds_read_u16 v{Y+4*p+i}, v{V_YG} offset:{p*16*YPAD + i*16}")
        e("s_mov_b64 exec, -1")
    e(f"""
    s_waitcnt vmcnt({5 + 9*d0})
    ds_write_b128 v{t0}, {q4(YL)}
    ds_write_b128 v{t0}, {q4(YL+4)} offset:{32*YPAD}
    s_cmp_lg_u32 s{S_WV}, 0
    s_cbranch_scc1 L_main_y3
    ds_write_b128 v{t0}, {q4(YL+8)} offset:{64*YPAD}
    L_main_y3:
    s_waitcnt lgkmcnt(0)
    s_barrier
    """)
    y_gather()
    e(f"s_waitcnt vmcnt({9*d0})")
    for i in range(10):
        unpack_lo(e, X + 2*i, XP + i); unpack_hi(e, X + 2*i + 1, XP + i)
    rstamp(e, 1, prof)
    e(f"""
    L_main_gate:
    v_and_b32 v{MK}, 32, v0
    v_cmp_eq_u32 vcc, 0, v{MK}
    s_nop 1
    v_cndmask_b32 v{MK}, 0, 1.0, vcc
    """)
    layernorm(e, True)
    e("s_waitcnt lgkmcnt(0)")
    for i in range(20): unpack_lo(e, Y + i, Y + i)
    for i in range(10): e(pk("mul", Dd + 2*i, Dd + 2*i, Y + 2*i))
    round20(e, Dd, PK, Dd)
    for i in range(10): e(pk("add", X + 2*i, X + 2*i, Dd + 2*i))
    round20(e, X, XP, X)
    layernorm(e, False)
    e(f"""
    s_lshr_b32 s8, s{S_JJ}, 1
    s_mul_i32 s8, s8, 18432
    s_and_b32 s9, s{S_JJ}, 1
    s_lshl_b32 s9, s9, 7
    s_add_u32 s8, s8, s9
    s_lshl_b32 s9, s{S_WV}, 5
    s_add_u32 s8, s8, s9
    s_add_u32 s9, s8, 8192
    s_add_u32 s{S_T}, s8, 16384
    """)
    for pp in range(3):
        e(f"v_permlane16_swap_b32 v{PK+4*pp}, v{PK+4*pp+2}\nv_permlane16_swap_b32 v{PK+4*pp+1}, v{PK+4*pp+3}")
    e(f"""
    buffer_store_dwordx4 {q4(PK)}, v{V_X0}, s[{S_XN}:{S_XN+3}], s8 offen sc1
    buffer_store_dwordx4 {q4(PK+4)}, v{V_X0}, s[{S_XN}:{S_XN+3}], s9 offen sc1
    buffer_store_dwordx4 {q4(PK+8)}, v{V_X4}, s[{S_XN}:{S_XN+3}], s{S_T} offen sc1
    """)
    rstamp(e, 2, prof, 0); rstamp(e, 8, prof, 1)
    e(f"""
    s_lshl_b32 s8, s{S_G}, 2
    s_add_u32 s8, s8, s{S_WV}
    s_mul_i32 s9, s8, {2*18432}
    s_add_u32 s8, s9, 18432
    s_mov_b32 s{S_CNT}, 0
    s_mov_b32 s{S_COL}, s{S_COL0}
    s_add_u32 s{S_O3}, s{S_COL0}, 128
    s_add_u32 s{S_O2}, s{S_O3}, {288*9216}
    s_mov_b32 s{S_HS}, {BIG}
    s_mov_b64 s[{S_A}:{S_A+1}], s[{S_WG}:{S_WG+1}]
    s_mov_b64 s[{S_A+2}:{S_A+3}], s[{S_WG+2}:{S_WG+3}]
    s_waitcnt vmcnt(0)
    s_barrier
    """)
    for x in sig_ops(1): e(x)
    if d0 < 3:
        e(f"s_cmp_lg_u32 s{S_LAY}, 0\ns_cbranch_scc1 L_main_nod")
        for s in range(d0, 3): dma_now(first3[s])
        e("L_main_nod:")
    e(f"s_add_u32 s{S_NX}, s{S_PRG}, 1")
    spin(e, "xn", S_NX, V_FP)
    rstamp(e, 3, prof, 0); rstamp(e, 9, prof, 1); fstamp(e, 1, prof)
    if d0 == 0: e("s_barrier")
    for k in range(18):
        for mt in range(2):
            e(f"buffer_load_dwordx4 {ar(8*k+4*mt)}, v{V_L16}, s[{S_XN}:{S_XN+3}], s{9-mt} offen offset:{(k%4)*1024} sc1")
        if k % 4 == 3: e("s_add_u32 s9, s9, 4096\ns_add_u32 s8, s8, 4096")
    R1 = lambda slot: (lambda f, h: rd1(slot, f >> 2, f & 3, h))
    for f2 in range(OPT['la']):
        va, off = R1(0)(f2 >> 1, f2 & 1); d = FB + 2 * f2
        e(f"ds_read_b64_tr_b16 a[{d}:{d+1}], v{va} offset:{off}")
    if not OPT['xw']: e("s_waitcnt vmcnt(0)")
    def p1_mf(ph):
        acc = G if ph < 2 else U
        def f_(f, mt, A):
            u, t = f >> 2, f & 3
            k = 9 * (ph & 1) + u
            c = acc + 8 * t + 4 * mt
            d = T + 8 * t + 4 * mt if (ph == 1 and u == 8) else c
            return mfma(d, A, ar(8 * k + 4 * mt), None if k == 0 else c)
        return f_
    dm = [dma_list(S_WU, D1, f"s_add_u32 s{S_O}, s{S_COL}, {288*9216}", S_O, 3), dma_list(S_WG, D1, None, S_COL, 0),
          dma_list(S_A, D1, None, S_O2, 1), dma_list(S_WU, D1, None, S_O3, 2)]
    ST = [Stage(p1_mf(ph), R1(ph), R1((ph + 1) & 3), [(dm[ph], DP)]) for ph in range(4)]
    ST[0].put(56, f"s_add_u32 s{S_COL}, s{S_COL}, 128")
    ST[0].put(58, f"s_cmp_eq_u32 s{S_CNT}, 3\ns_cbranch_scc1 L_main_sw\nL_main_swb:")
    ST[3].put(56, f"s_add_u32 s{S_O2}, s{S_O2}, 128"); ST[3].put(57, f"s_add_u32 s{S_O3}, s{S_O3}, 128")
    so = [f"s_add_u32 s{S_T}, s{S_NX}, s{S_CNT}"] + sig_ops(0)[1:]
    ST[3].put(58, so[0]); ST[3].put(59, so[1]); ST[3].put(60, so[2])
    ST[3].put(62, f"s_cmp_eq_u32 s{S_CNT}, 0"); ST[3].put(62, f"s_cselect_b32 s{S_HS}, s{S_HO}, s{S_HS}"); ST[3].put(63, f"s_add_u32 s{S_HS}, s{S_HS}, 4096")
    ST[3].put(70, f"s_add_u32 s{S_CNT}, s{S_CNT}, 1"); ST[3].put(71, f"s_cmp_lt_u32 s{S_CNT}, 4")
    XW = {0: [], 1: list(range(9)), 3: [0, 3, 6], 2: [0, 2, 4, 6]}[OPT['xw']]
    for s in ST: add(s.pre, s.bar, "X\nX")
    for ph in range(2):
        for u in XW: add(ST[ph].pre, 8 * u, "X")
    na = OPT['ga'] // 4
    place(ST[:2], fin_block(STG), 2, 134)
    uo = []
    for q in range(na): uo += chain(quad(T, q), V_T + 4 * (q & 1))
    place(ST[2:], uo, 2, 144)
    for s in ST:
        for k in list(s.pre): s.pre[k] = [x for x in s.pre[k] if not x.startswith("X")]
    def vm_between(seq, a, b):
        return sum(1 for i, s in seq for (p, t) in s.vm if a < (i, p) < b)
    cyc = [(i, ST[i % 4]) for i in range(-4, 4)]
    for ph in range(4):
        lim = (ph - 2, DP[-1])
        if ph == 3: lim = max(lim, max((1, p) for p, t in ST[1].vm))
        ST[ph].barrier(vm_between(cyc, lim, (ph, ST[ph].bar - 1 + 0.5)))
    fwd = [(i, ST[i]) for i in range(2)]
    for ph in range(2):
        for n, u in enumerate(XW):
            ulast = (XW[n + 1] if n + 1 < len(XW) else 9) - 1
            k = 9 * ph + ulast
            ST[ph].pre[8 * u].insert(0, f"s_waitcnt vmcnt({36 - (2*k+2) + vm_between(fwd, (-1, 0), (ph, 8*u - 0.5))})")
    e(f"""
    s_lshl_b32 s{S_HO}, s{S_JJ}, 2
    s_add_u32 s{S_HO}, s{S_HO}, s{S_WV}
    s_mul_i32 s{S_HO}, s{S_HO}, 18432
    s_sub_u32 s{S_HO}, s{S_HO}, 4096
    s_add_u32 s{S_NX}, s{S_PRG}, 2
    .p2align 6
    L_main_p1:
    """)
    for c_ in range(4): fstamp(e, 2 + c_, prof, c_)
    for s in ST: s.emit(e)
    e("s_cbranch_scc1 L_main_p1")
    fstamp(e, 6, prof)
    def ph_mf(acc):
        def f_(f, mt, A):
            u, t = f >> 2, f & 3
            k = u + 9 * (t >> 1)
            c = acc + 8 * (t & 1) + 4 * mt
            d = T + 8 * (t & 1) + 4 * mt if (acc == G and u == 8 and t >= 2) else c
            return mfma(d, A, ar(8 * k + 4 * mt), None if (u == 0 and t < 2) else c)
        return f_
    slot2 = lambda sg: (sg + 3) & 3
    wd = lambda sg: dma_list(S_WD, D2, f"v_readlane_b32 s{S_O}, v{V_TAB}, {sg}", S_O, slot2(sg))
    wd2 = lambda sg: dma_list(S_WD, D2, f"v_readlane_b32 s{S_O2}, v{V_TAB}, {sg}", S_O2, slot2(sg))
    def fmap(sg):
        return (lambda f: (f & 3, f >> 2)) if sg == 8 else (lambda f: (f // 9, f % 9))
    R2 = lambda sg: (lambda f, h: rd2(slot2(sg), *fmap(sg)(f), h))
    def p2_mf(sg):
        def f_(f, mt, A):
            kl, tau = fmap(sg)(f)
            d, k = ENT[4 * sg + kl]
            c = ACC2[2 * tau + mt]
            return mfma(c, A, h_reg(d, k, mt), None if (sg == 0 and kl == 0) else c)
        return f_
    DPW = [7, 12, 17, 22, 27, 32, 38, 44, 50]
    nxt = [dma_list(S_WG, D1, None, S_COL, 0), dma_list(S_WG, D1, f"s_add_u32 s{S_O}, s{S_COL}, {288*9216}", S_O, 1), dma_list(S_WU, D1, None, S_COL, 2)]
    HG = Stage(ph_mf(G), R1(0), R1(1), [(wd(0), DPW)])
    HU = Stage(ph_mf(U), R1(1), R2(0), [(wd(1), DPW)])
    P2 = []
    for sg in range(9):
        if sg == 0: dms = [(wd(2), [7, 10, 13, 16, 19, 22, 25, 28, 30]), (wd2(3), [33, 35, 37, 39, 42, 44, 46, 48, 51])]
        elif sg < 6: dms = [(wd(sg + 3), DPW)]
        else: dms = [(nxt[sg - 6], DPW)]
        P2.append(Stage(p2_mf(sg), R2(sg), R2(sg + 1) if sg < 8 else None, dms, last=(sg == 8)))
    A_ = [HG, HU] + P2
    for s in A_: add(s.pre, s.bar, "X\nX")
    slow = []
    def check(st, i, k, tag):
        st.put(i, f"s_add_u32 s{S_NX}, s{S_PRG}, {k}")
        st.put(i + 1, f"v_cmp_gt_u32 vcc, s{S_NX}, v{V_FV}")
        st.put(i + 2, f"s_cbranch_vccnz L_slow{tag}\nL_back{tag}:")
        slow.append(tag)
    for n in range(9): HG.put(56 + n, f"v_sub_u32 v{D1+n}, v{D1+n}, v{V_DH}")
    HU.put(60, f"s_cmp_lg_u32 s{S_LAY}, 0"); HU.put(60, f"s_cselect_b32 s{S_COL}, {BIG}, s{S_COL0}")
    HU.put(0, FLAG_Q); check(HU, 55, 5, "e")
    own = h_loads(0, range(6), S_HS)
    own = [x.replace(f"s_add_u32 s{S_HO}, s{S_HS}, ", f"s_sub_u32 s{S_HO}, s{S_HS}, ") if x.startswith("s_add") else x for x in own]
    own = [(f"s_sub_u32 s{S_HO}, s{S_HS}, {12288 - int(x.split(',')[-1])}" if x.startswith("s_sub") else x) for x in own]
    for n, x in enumerate(own): HG.put(1 + 3 * n, x)
    ops = fin_block(STG)
    o2 = []
    for q in range(4): o2 += chain(quad(T, q), V_T + 4 * (q & 1))
    cut = (len(ops) + len(o2)) // 2
    place([HG], ops[:cut], 2, 66)
    place([HU], ops[cut:] + o2, 3, 72)
    tr_ops = [f"s_add_u32 s{S_HS}, s{S_HS}, 4096"] + fin_block(HB + 64, 4)
    place([P2[0]], tr_ops, 2, 30)
    hl = {1: S_HA, 2: S_HB, 3: S_HC}
    if not OPT['nohx']:
        place([P2[0]], h_loads(1, range(6), S_HA), 0, 52)
        place([P2[1]], h_loads(2, range(6), S_HB), 0, 52)
        place([P2[2]], h_loads(3, range(6), S_HC), 0, 52)
    for n, x in enumerate(sig_ops(6)): P2[1].put(55 + n, x)
    P2[3].put(0, FLAG_Q); check(P2[3], 55, 6, "l")
    if not OPT['nohx']:
        place([P2[3]], h_loads(1, (6, 7, 8), S_HA), 58, 72)
        place([P2[4]], h_loads(2, (6, 7, 8), S_HB) + h_loads(3, (6, 7, 8), S_HC), 0, 52)
    for p in range(3):
        n = 16 * p + 19
        for x in out_pair(p):
            P2[8].put(n, x)
            if not x.startswith("buffer"): n += 1
    for s in A_:
        for k in list(s.pre): s.pre[k] = [x for x in s.pre[k] if not x.startswith("X")]
    seq = [(-2, ST[2]), (-1, ST[3])] + list(enumerate(A_))
    def lastvm(i, pred=lambda p, t: True): return max((i, p) for p, t in dict(seq)[i].vm if pred(p, t))
    isdma = lambda p, t: t == 'dma'
    src = {0: lastvm(-2, isdma), 1: lastvm(0, isdma), 2: lastvm(1, isdma), 3: (2, 30)}
    for i in range(4, 10): src[i] = lastvm(i - 2, isdma)
    extra = {1: [(1, 0), lastvm(0)],
             3: [lastvm(2)],
             5: [(5, 0)],
             6: [lastvm(4)],
             8: [lastvm(6)]}
    for i, s in enumerate(A_):
        if i == 10: continue
        lim = max([src[i]] + extra.get(i, []))
        s.barrier(vm_between(seq, lim, (i, s.bar - 0.5)))
    for i, s in enumerate(A_):
        s.emit(e)
        if i == 1: rstamp(e, 4, prof, OPT['sl'])
        if i in (1, 4, 7, 10): fstamp(e, {1: 7, 4: 8, 7: 9, 10: 10}[i], prof)
    for x in out_pair(3): e(x)
    for x in out_single(): e(x)
    rstamp(e, 5, prof, OPT['sl'])
    e("""
    v_bfe_u32 v144, v0, 1, 3
    v_and_b32 v145, 1, v0
    v_lshlrev_b32 v145, 4, v145
    s_mov_b32 s8, 0x3f80
    v_lshlrev_b32 v145, v145, s8
    """)
    for i in range(8):
        e(f"v_cmp_eq_u32 vcc, {i}, v144\ns_nop 1\nv_cndmask_b32 v{SEL+i}, 0, v145, vcc")
    for i in range(10):
        unpack_lo(e, X + 2*i, XP + i); unpack_hi(e, X + 2*i + 1, XP + i)
    e("s_waitcnt vmcnt(0)\ns_barrier")
    for x in sig_ops(7): e(x)
    rstamp(e, 6, prof, OPT['sl'])
    y_gather()
    spin(e, "fin", S_T, V_FP)
    for sg in range(9):
        e(f"buffer_load_dwordx4 {ar(4*sg)}, v{V_PL}, s[{S_P}:{S_P+3}], s{S_PB} offen offset:{sg*256} sc1")
    for sg in range(9):
        d = DT + 4 * (sg >> 1)
        e(f"s_waitcnt vmcnt({8 - sg})")
        e(mfma(d, q4(SEL + 4 * (sg & 1)), ar(4 * sg), d if sg & 1 else None))
    e("s_nop 7")
    round20(e, DT, PK, Dd)
    for i in range(10): e(pk("add", X + 2*i, X + 2*i, Dd + 2*i))
    e(f"s_cmp_lg_u32 s{S_LAY}, 0\ns_cbranch_scc1 L_main_fin")
    round20(e, X, XP, X)
    rstamp(e, 7, prof)
    e(f"""
    s_mov_b32 s{S_LAY}, 1
    s_mov_b32 s{S_PRG}, 16
    s_add_u32 s{S_XN}, s{S_XN}, {WS_XN[1] - WS_XN[0]}
    s_addc_u32 s{S_XN+1}, s{S_XN+1}, 0
    s_add_u32 s{S_P}, s{S_P}, {WS_P3[1] - WS_P3[0]}
    s_addc_u32 s{S_P+1}, s{S_P+1}, 0
    s_add_u32 s{S_HX}, s{S_HX}, {WS_HX[1] - WS_HX[0]}
    s_addc_u32 s{S_HX+1}, s{S_HX+1}, 0
    s_branch L_main_gate
    L_main_sw:
    s_and_b32 s8, s{S_J}, 1
    s_mul_i32 s8, s8, {512+64}
    s_add_u32 s{S_O2}, s{S_COL0}, 512
    s_sub_u32 s{S_O2}, s{S_O2}, s8
    s_mov_b32 s{S_COL}, s{S_O2}
    s_mov_b32 s{S_O3}, {BIG}
    s_mov_b64 s[{S_A}:{S_A+1}], s[{S_WU}:{S_WU+1}]
    """)
    for n in range(9): e(f"v_add_u32 v{D1+n}, v{D1+n}, v{V_DH}")
    e("s_branch L_main_swb")
    for tag in slow:
        e(f"L_slow{tag}:")
        spin(e, f"s{tag}", S_NX, V_FQ)
        e(f"s_branch L_back{tag}")
    e("L_main_fin:")
    round20(e, X, XP, None)
    srd(e, S_MISC, S_OUT, 0, ACT)
    for p in range(5): e(f"buffer_store_dwordx2 {pr(XP+2*p)}, v{V_A if p < 4 else V_A4}, s[{S_MISC}:{S_MISC+3}], s{S_RP} offen offset:{256*p}")
    if prof:
        e("s_waitcnt vmcnt(0)")
        rstamp(e, 10, prof)
        e("s_waitcnt lgkmcnt(0)")
        srd(e, S_MISC, 10, WS_DBG + 3 * 65536, 1024 * 128)
        e(f"s_lshl_b32 s8, s2, 2\ns_add_u32 s8, s8, s{S_WV}\ns_lshl_b32 s8, s8, 7\nv_mov_b32 v1, s8")
        for i in range(11):
            e(f"v_mov_b32 v2, 0\nv_mov_b32 v3, s{76+2*i}\nbuffer_store_dwordx2 v[2:3], v1, s[{S_MISC}:{S_MISC+3}], 0 offen offset:{8*i}\ns_nop 1")
    e("L_main_end:\ns_endpgm")
    return dict(name=name, grid=256, block=256, lds=LDS_TOTAL, desc=kernel_desc(name, NV, NA, sgpr=102))
```

```python
from common import *
from k_ln import rowsum, YPAD
from k_ffn import C1, C2

WS_CNT = 120 * MiB + 65536
CNT_BYTES = 8192
WS_HX = [60 * MiB, 80 * MiB]
WS_P3 = [40 * MiB, 50 * MiB]
HXB = 256 * 73728
P3B = 4 * ACT
SPIN_MAX = 100000
LDS_Y = 4 * STAGE
LDS_TOTAL = LDS_Y + 72 * YPAD
BIG = 0x7f000000
WB = D * F * 2
OPT = dict(sleep=1, d0=1, xw=3, stf="sc1", ga=20, cyc=0, nogelu=0, nolds=0, nodma=0, nost=0, sl=0, la=18, even=1, nohx=0, bal=1, fine=0,
           xpre=6, xr=2, dl=1, pad=0, xw2=1, pbd=20, c0=145, c1=246, sg6=2, he0=24, he1=322, hl0=378, hl1=502, fe=20, fl=290, ow0=2, ow1=112, wp=1)
S_WG, S_WU, S_WD, S_XN, S_P, S_FL, S_A, S_HX, S_MISC = 12, 16, 20, 24, 28, 32, 36, 40, 44
(S_WV, S_C1, S_WO, S_ST0, S_ST1, S_CNT, S_O, S_T, S_J, S_G, S_JJ, S_RP, S_INV, S_LAY, S_PB, S_COL, S_O2, S_O3,
 S_COL0, S_PRG, S_SPIN, S_NX, S_HS, S_HA, S_HB, S_HC, S_HO) = range(48, 75)
S_OUT = 6
TR1, TR2, D1, D2, V_DH = 1, 13, 16, 25, 34
V_ST, V_ST8, V_C2, V_L16, V_PL, V_FS, V_FP, V_FD, V_FV, V_FQ, V_A, V_A4, V_X0, V_X4, V_YG, V_TAB = range(35, 51)
V_D1S = 51
V_T = 52
G, T, U, EX, HB, XP = 60, 92, 124, 156, 164, 236
STG = HB + 48
NV = 248
FB = 144
NA = 192
X, Dd, PK, TM, DT, SEL, MK, Y = 124, 92, 112, 144, 60, 80, 148, 164
ACC2 = [G + 4 * i for i in range(8)] + [T + 16 + 4 * i for i in range(4)] + [U + 16 + 4 * i for i in range(4)] + [EX, EX + 4]

def pr(a): return f"v[{a}:{a+1}]"
def pk(op, d, a, b, mod=""): return f"v_pk_{op}_f32 {pr(d)}, {pr(a)}, {pr(b)} {mod}".rstrip()
BC = "op_sel_hi:[1,0]"
NEG = "op_sel_hi:[1,0] neg_lo:[0,1] neg_hi:[0,1]"
def q4(a): return f"v[{a}:{a+3}]"
def mfma(Dr, A, B, C): return f"v_mfma_f32_16x16x32_bf16 {q4(Dr)}, {A}, {B}, " + ("0" if C is None else q4(C))
def add(d, i, x): d.setdefault(i, []).append(x)

def fstamp(e, i, prof, cnt=None):
    if not prof or not OPT['fine']: return
    op = "s_memtime" if OPT['cyc'] else "s_memrealtime"
    e(f"s_cmp_lg_u32 s{S_LAY}, {OPT['sl']}\ns_cbranch_scc1 L_fst{i}")
    if cnt is not None: e(f"s_cmp_lg_u32 s{S_CNT}, {cnt}\ns_cbranch_scc1 L_fst{i}")
    e(f"{op} s[{76+2*i}:{77+2*i}]\nL_fst{i}:")
def rstamp(e, i, prof, lay=None):
    if not prof: return
    if OPT['fine'] and i not in (0,): return
    op = "s_memtime" if OPT['cyc'] else "s_memrealtime"
    if lay is None: e(f"{op} s[{76+2*i}:{77+2*i}]")
    else: e(f"s_cmp_lg_u32 s{S_LAY}, {lay}\ns_cbranch_scc1 L_stp{i}\n{op} s[{76+2*i}:{77+2*i}]\nL_stp{i}:")

def round20(e, src, pkr, dst):
    for i in range(10): e(f"v_cvt_pk_bf16_f32 v{pkr+i}, v{src+2*i}, v{src+2*i+1}")
    if dst is not None:
        for i in range(10):
            unpack_lo(e, dst + 2*i, pkr + i); unpack_hi(e, dst + 2*i + 1, pkr + i)

def layernorm(e, unpack):
    T_ = TM
    e(pk("add", T_, X, X + 2)); e(pk("add", T_ + 2, X + 4, X + 6))
    for i in range(4, 10): e(pk("add", T_ + 2 * (i & 1), T_ + 2 * (i & 1), X + 2 * i))
    e(pk("add", T_, T_, T_ + 2))
    e(f"v_add_f32 v{T_}, v{T_}, v{T_+1}")
    rowsum(e, T_, T_ + 1)
    e(f"v_mul_f32 v{T_}, s{S_INV}, v{T_}")
    for i in range(10): e(pk("add", Dd + 2*i, X + 2*i, T_, NEG))
    for i in (8, 9): e(pk("mul", Dd + 2*i, Dd + 2*i, MK, BC))
    e(pk("mul", T_ + 2, Dd, Dd))
    for i in range(1, 10): e(f"v_pk_fma_f32 {pr(T_+2)}, {pr(Dd+2*i)}, {pr(Dd+2*i)}, {pr(T_+2)}")
    e(f"v_add_f32 v{T_+2}, v{T_+2}, v{T_+3}")
    rowsum(e, T_ + 2, T_ + 3)
    e(f"v_mul_f32 v{T_+2}, s{S_INV}, v{T_+2}")
    e(f"v_cvt_pk_bf16_f32 v{T_+1}, v{T_}, v{T_+2}")
    unpack_hi(e, T_ + 2, T_ + 1); unpack_lo(e, T_, T_ + 1)
    e(f"v_add_f32 v{T_+2}, 0x3727c5ac, v{T_+2}")
    e(f"v_cvt_pk_bf16_f32 v{T_+2}, v{T_+2}, v{T_+2}")
    unpack_hi(e, T_ + 2, T_ + 2)
    e(f"v_sqrt_f32 v{T_+2}, v{T_+2}")
    for i in range(10): e(pk("add", Dd + 2*i, X + 2*i, T_, NEG))
    e(f"v_cvt_pk_bf16_f32 v{T_+2}, v{T_+2}, v{T_+2}")
    unpack_hi(e, T_ + 2, T_ + 2)
    e(f"v_rcp_f32 v{T_+2}, v{T_+2}")
    round20(e, Dd, PK, Dd)
    for i in range(10): e(pk("mul", Dd + 2*i, Dd + 2*i, T_ + 2, BC))
    round20(e, Dd, PK, Dd if unpack else None)

def dma_list(srd_, vb, pre0, sreg, slot):
    L = []
    for n in range(9):
        pre = []
        if n == 0 and pre0: pre.append(pre0)
        if n % 4 == 0: pre.append(f"s_add_u32 m0, s{S_WO}, {slot*STAGE + n*1024}")
        L.append((pre, f"buffer_load_dwordx4 v{vb+n}, s[{srd_}:{srd_+3}], s{sreg} offen offset:{(n%4)*1024} lds"))
    return L

def rd1(slot, u, t, h):
    a = slot * STAGE + u * 4096 + h * 2048
    k = a // 49152
    return TR1 + 4 * k + t, a - k * 49152
def rd2(slot, kl, tau, h):
    a = slot * STAGE + kl * 9216
    k = a // 55296
    return TR2 + k, a - k * 55296 + h * 4608 + 32 * tau

def cost(x):
    if x.startswith(("v_exp", "v_rcp")): return 2
    return x.count("\n") + 1 - x.count(":\n") - (1 if x.endswith(":") else 0)

class Stage:
    def __init__(s, mf_of, rd, rdn, dmas=(), last=False):
        LAH = OPT['la']
        s.mf_of = mf_of; s.fl = {}; s.pre = {}; s.bar = 72 - LAH; s.vm = []
        for i in range(72):
            f2 = i + LAH; f, h = f2 >> 1, f2 & 1
            if f >= 36 and last: continue
            va, off = rd(f, h) if f < 36 else rdn(f - 36, h)
            d = FB + 4 * (f % 12) + 2 * h
            add(s.fl, i, f"ds_read_b64_tr_b16 a[{d}:{d+1}], v{va} offset:{off}")
        for g in range(6):
            n = LAH - 12
            if last and g == 5: n = 0
            add(s.pre, 12 * g, f"s_waitcnt lgkmcnt({n})")
        for L, pos in dmas:
            for (prs, d), p in zip(L, pos):
                for x in prs: add(s.fl, p - (6 if x.startswith("v_readlane") else 1), x)
                add(s.fl, p, d); s.vm.append((p, 'dma'))
    def put(s, i, x):
        add(s.fl, i, x)
        if x.startswith("buffer"): s.vm.append((i, 'x'))
    def barrier(s, vmn):
        add(s.pre, s.bar, f"s_waitcnt vmcnt({vmn})\ns_barrier")
    def fixed(s):
        c = [0] * 72
        for i in range(72):
            c[i] += sum(cost(x) for x in s.fl.get(i, []))
            if i > 0: c[i - 1] += sum(cost(x) for x in s.pre.get(i, []))
        return c
    def emit(s, e):
        for i in range(72):
            f = i >> 1
            a = FB + 4 * (f % 12)
            for x in s.pre.get(i, []): e(x)
            e(s.mf_of(f, i & 1, f"a[{a}:{a+3}]"))
            for x in s.fl.get(i, []):
                if OPT['nogelu'] and x.startswith("v_") and not x.startswith(("v_add_u32", "v_cmp", "v_mov", "v_readlane", "v_sub")): continue
                if OPT['nolds'] and x.startswith("ds_read"): continue
                if OPT['nodma'] and x.endswith(" lds"): continue
                if OPT['nost'] and x.startswith("buffer_store_dwordx"): continue
                e(x)

def place(stages, ops, lo, hi):
    c = sum((s.fixed() for s in stages), [])
    tot = sum(c[lo:hi]) + sum(cost(x) for x in ops)
    avg = tot / (hi - lo)
    cum = 0; k = 0; pos = []
    for i in range(lo, hi):
        cum += c[i]
        if OPT['bal']:
            while k < len(ops) and (cum + cost(ops[k]) * 0.5 <= (i - lo + 1) * avg or i == hi - 1):
                stages[i // 72].put(i % 72, ops[k]); cum += cost(ops[k]); pos.append(i); k += 1
        else:
            while k < len(ops) and k * (hi - lo) // len(ops) <= i - lo:
                stages[i // 72].put(i % 72, ops[k]); pos.append(i); k += 1
    return pos

DP = [3, 9, 15, 21, 27, 33, 39, 45, 51]

def chain(vals, tmp):
    o = []
    for k, v in enumerate(vals): o.append(f"v_mul_f32 v{tmp+k}, v{v}, v{v}")
    for k, v in enumerate(vals): o.append(f"v_fma_f32 v{tmp+k}, v{tmp+k}, v{V_C2}, s{S_C1}")
    for k, v in enumerate(vals): o.append(f"v_mul_f32 v{tmp+k}, v{tmp+k}, v{v}")
    for k, v in enumerate(vals): o.append(f"v_exp_f32 v{tmp+k}, v{tmp+k}")
    for k, v in enumerate(vals): o.append(f"v_add_f32 v{tmp+k}, 1.0, v{tmp+k}")
    for k, v in enumerate(vals): o.append(f"v_rcp_f32 v{tmp+k}, v{tmp+k}")
    for k, v in enumerate(vals): o.append(f"v_mul_f32 v{v}, v{v}, v{tmp+k}")
    return o
def quad(base, q): return [base + 4 * q + i for i in range(4)]
def fin_mul(q): return [f"v_mul_f32 v{U+4*q+i}, v{T+4*q+i}, v{U+4*q+i}" for i in range(4)]
def fin_cvt(q, hb):
    t, mt = q >> 1, q & 1
    return [f"v_cvt_pk_bf16_f32 v{hb + 8*(t>>1) + 4*mt + 2*(t&1) + h}, v{U+4*q+2*h}, v{U+4*q+2*h+1}" for h in range(2)]
def h_store(reg, n):
    return f"buffer_store_dwordx4 {q4(reg)}, v{V_L16}, s[{S_HX}:{S_HX+3}], s{S_HS} offen offset:{n*1024} sc1"
def fin_block(hb, nq=8):
    na = OPT['ga'] // 4
    ops = []
    for q in range(nq):
        if nq == 8 and q >= na: ops += chain(quad(T, q), V_T + 4 * (q & 1))
        ops += fin_mul(q) + fin_cvt(q, hb)
        if (q >> 1) & 1: ops.append(h_store(hb + 8 * (q >> 2) + 4 * (q & 1), 2 * (q >> 2) + (q & 1)))
    return ops

def spin(e, u, need, vaddr):
    e(f"""
    s_mov_b32 s{S_SPIN}, 0
    L_spin_{u}:
    buffer_load_dword v{V_FV}, v{vaddr}, s[{S_FL}:{S_FL+3}], 0 offen sc1
    s_add_u32 s{S_SPIN}, s{S_SPIN}, 1
    s_waitcnt vmcnt(0)
    v_cmp_gt_u32 vcc, s{need}, v{V_FV}
    s_cmp_ge_u32 s{S_SPIN}, {SPIN_MAX}
    s_cbranch_scc1 L_spun_{u}
    s_cbranch_vccz L_spun_{u}
    """)
    if OPT['sleep']: e(f"s_sleep {OPT['sleep']}")
    e(f"s_branch L_spin_{u}\nL_spun_{u}:")

def sig_ops(k):
    return [f"s_add_u32 s{S_T}, s{S_PRG}, {k}", f"v_mov_b32 v{V_FD}, s{S_T}",
            f"buffer_store_dword v{V_FD}, v{V_FS}, s[{S_FL}:{S_FL+3}], 0 offen sc1"]
FLAG_Q = f"buffer_load_dword v{V_FV}, v{V_FQ}, s[{S_FL}:{S_FL+3}], 0 offen sc1"

ENT = [(0, k) for k in range(9)] + [(d, k) for d in (1, 2, 3) for k in range(6)] + [(d, k) for d in (1, 2, 3) for k in (6, 7, 8)]
def h_reg(d, k, mt):
    if d == 0: return q4(HB + 8 * k + 4 * mt)
    if k < 6: return ar(48 * (d - 1) + 8 * k + 4 * mt)
    return q4(HB + 24 * (d - 1) + 8 * (k - 6) + 4 * mt)
def h_loads(d, ks, sbase):
    L = []; cur = None
    for k in ks:
        for mt in range(2):
            n = 2 * k + mt
            if n // 4 != cur:
                cur = n // 4
                L.append(f"s_add_u32 s{S_HO}, s{sbase}, {cur*4096}")
            L.append(f"buffer_load_dwordx4 {h_reg(d, k, mt)}, v{V_L16}, s[{S_HX}:{S_HX+3}], s{S_HO} offen offset:{(n%4)*1024} sc1")
    return L

def out_pair(p):
    L = []
    for mt in range(2):
        O = V_T + 4 * mt
        for h in range(2):
            a = ACC2[2 * (2 * p + h) + mt]
            L.append(f"v_cvt_pk_bf16_f32 v{O+2*h}, v{a}, v{a+1}")
            L.append(f"v_cvt_pk_bf16_f32 v{O+2*h+1}, v{a+2}, v{a+3}")
        L.append(f"buffer_store_dwordx4 {q4(O)}, v{V_ST}, s[{S_P}:{S_P+3}], s{S_ST0+mt} offen offset:{128*p} {OPT['stf']}".rstrip())
    return L
def out_single():
    L = []
    for mt in range(2):
        O = HB + 2 * mt; a = ACC2[16 + mt]
        L += [f"v_cvt_pk_bf16_f32 v{O}, v{a}, v{a+1}", f"v_cvt_pk_bf16_f32 v{O+1}, v{a+2}, v{a+3}"]
    for mt in range(2):
        L.append(f"buffer_store_dwordx2 {pr(HB+2*mt)}, v{V_ST8}, s[{S_P}:{S_P+3}], s{S_ST0+mt} offen {OPT['stf']}".rstrip())
    return L

def emit_main(e, name="main_kernel", prof=False):
    kernel_head(e, name)
    e(f"""
    s_cmp_ge_u32 s2, 256
    s_cbranch_scc1 L_main_end
    s_load_dwordx2 s[10:11], s[0:1], {KA['ws']}
    s_load_dwordx2 s[4:5], s[0:1], {KA['q']}
    s_load_dwordx4 s[36:39], s[0:1], {KA['wg']}
    s_load_dwordx4 s[40:43], s[0:1], {KA['wd']}
    """)
    rstamp(e, 0, prof)
    L_, R_, D_, B_, C_, A_, BG = 60, 61, 62, 63, 64, 65, 66
    t0, t1, t2, t3 = 67, 68, 69, 70
    e(f"""
    v_lshrrev_b32 v{t0}, 6, v0
    v_and_b32 v{L_}, 63, v0
    v_lshlrev_b32 v{V_L16}, 4, v{L_}
    v_readfirstlane_b32 s{S_WV}, v{t0}
    s_and_b32 s{S_J}, s2, 3
    s_lshl_b32 s{S_J}, s{S_J}, 2
    s_bfe_u32 s6, s2, 0x20003
    s_add_u32 s{S_J}, s{S_J}, s6
    s_lshr_b32 s{S_G}, s2, 5
    s_lshl_b32 s{S_G}, s{S_G}, 1
    s_bfe_u32 s6, s2, 0x10002
    s_add_u32 s{S_G}, s{S_G}, s6
    s_lshl_b32 s{S_JJ}, s{S_G}, 4
    s_add_u32 s{S_JJ}, s{S_JJ}, s{S_J}
    s_lshl_b32 s{S_RP}, s{S_JJ}, 2
    s_add_u32 s{S_RP}, s{S_RP}, s{S_WV}
    s_mul_i32 s{S_RP}, s{S_RP}, 2304
    v_and_b32 v{R_}, 1, v0
    v_bfe_u32 v{D_}, v0, 1, 2
    v_bfe_u32 v{B_}, v0, 3, 1
    v_bfe_u32 v{C_}, v0, 4, 1
    v_bfe_u32 v{A_}, v0, 5, 1
    v_mul_u32_u24 v{V_A}, 1152, v{R_}
    v_lshl_add_u32 v{V_A}, v{A_}, 7, v{V_A}
    v_lshl_add_u32 v{V_A}, v{B_}, 6, v{V_A}
    v_lshl_add_u32 v{V_A}, v{C_}, 5, v{V_A}
    v_lshl_add_u32 v{V_A}, v{D_}, 3, v{V_A}
    v_mov_b32 v{BG}, {BIG}
    v_cmp_gt_u32 vcc, 32, v{L_}
    v_lshlrev_b32 v{t0}, 4, v0
    s_mul_i32 s6, s{S_JJ}, 9216
    v_cndmask_b32 v{V_A4}, v{BG}, v{V_A}, vcc
    s_add_u32 s7, s6, 4096
    s_add_u32 s8, s6, 8192
    s_cmp_lg_u32 s{S_WV}, 0
    s_cselect_b32 s8, {BIG}, s8
    s_waitcnt lgkmcnt(0)
    """)
    YL = 72
    srd(e, S_MISC, 10, WS_YT, ACT); srd(e, S_P, 4, 0, ACT)
    e(f"""
    buffer_load_dwordx4 {q4(YL)}, v{t0}, s[{S_MISC}:{S_MISC+3}], s6 offen
    buffer_load_dwordx4 {q4(YL+4)}, v{t0}, s[{S_MISC}:{S_MISC+3}], s7 offen
    buffer_load_dwordx4 {q4(YL+8)}, v{t0}, s[{S_MISC}:{S_MISC+3}], s8 offen
    """)
    for p in range(5): e(f"buffer_load_dwordx2 {pr(XP+2*p)}, v{V_A if p < 4 else V_A4}, s[{S_P}:{S_P+3}], s{S_RP} offen offset:{256*p}")
    srd(e, S_WG, 36, 0, WB); srd(e, S_WU, 38, 0, WB); srd(e, S_WD, 40, 0, WB)
    e(f"""
    s_mov_b32 s{S_OUT}, s42
    s_mov_b32 s{S_OUT+1}, s43
    s_and_b32 s8, s{S_J}, 1
    s_mul_i32 s9, s{S_J}, 576
    s_lshl_b32 s{S_COL0}, s8, 6
    s_add_u32 s{S_COL0}, s{S_COL0}, s9
    s_mul_i32 s{S_WO}, s{S_WV}, 9216
    s_mul_i32 s9, s{S_WV}, 72
    v_lshrrev_b32 v{t0}, 3, v{L_}
    v_lshrrev_b32 v{t1}, 1, v{t0}
    v_xor_b32 v{t1}, v{t1}, v{D_}
    v_add_u32 v{t0}, s9, v{t0}
    v_lshlrev_b32 v{t2}, 5, v{t1}
    v_lshl_add_u32 v{t2}, v{R_}, 4, v{t2}
    v_mul_u32_u24 v{D1}, 9216, v{t0}
    v_add_u32 v{D1}, v{D1}, v{t2}
    v_lshrrev_b32 v{t1}, 1, v{t1}
    v_mul_u32_u24 v{V_DH}, {288*9216 - 64}, v{t1}
    """)
    for n in range(1, 9): e(f"v_add_u32 v{D1+n}, {n*8*9216 - (n%4)*1024}, v{D1}")
    e(f"v_mov_b32 v{V_D1S}, v{D1}")
    first3 = [dma_list(S_WG, D1, None, S_COL0, 0), dma_list(S_WG, D1, f"s_add_u32 s{S_O}, s{S_COL0}, {288*9216}", S_O, 1),
              dma_list(S_WU, D1, None, S_COL0, 2), dma_list(S_WU, D1, f"s_add_u32 s{S_O}, s{S_COL0}, {288*9216}", S_O, 3)]
    def dma_now(L):
        for prs, d in L:
            for x in prs: e(x)
            if prs: e("s_nop 0")
            e(d)
    d0 = OPT['d0']
    for s in range(d0): dma_now(first3[s])
    srd(e, S_XN, 10, WS_XN[0], ACT); srd(e, S_P, 10, WS_P3[0], P3B); srd(e, S_FL, 10, WS_CNT, CNT_BYTES); srd(e, S_HX, 10, WS_HX[0], HXB)
    e(f"""
    s_lshl_b32 s8, s8, 1
    """)
    for n in range(9):
        e(f"""
        v_add_u32 v{t0}, {64*n}, v{L_}
        v_mul_u32_u24 v{t1}, 3641, v{t0}
        v_lshrrev_b32 v{t1}, 16, v{t1}
        v_mul_u32_u24 v{t2}, 18, v{t1}
        v_sub_u32 v{t0}, v{t0}, v{t2}
        v_add_u32 v{t0}, s8, v{t0}
        v_subrev_u32 v{t2}, 18, v{t0}
        v_min_u32 v{t0}, v{t0}, v{t2}
        v_mul_u32_u24 v{t1}, 1152, v{t1}
        v_lshl_add_u32 v{t1}, v{t0}, 4, v{t1}
        v_subrev_u32 v{D2+n}, {(n%4)*1024}, v{t1}
        """)
    e(f"""
    v_lshl_add_u32 v{t0}, v{L_}, 2, s{S_WV}
    v_subrev_u32 v{t1}, 9, v{t0}
    v_mul_u32_u24 v{t2}, 43, v{t1}
    v_lshrrev_b32 v{t2}, 8, v{t2}
    v_mul_u32_u24 v{t3}, 6, v{t2}
    v_sub_u32 v{t1}, v{t1}, v{t3}
    v_add_u32 v{t2}, 1, v{t2}
    v_cmp_gt_u32 vcc, 9, v{t0}
    v_subrev_u32 v71, 27, v{t0}
    v_mul_u32_u24 v84, 86, v71
    v_cndmask_b32 v{t1}, v{t1}, v{t0}, vcc
    v_cndmask_b32 v{t2}, v{t2}, 0, vcc
    v_lshrrev_b32 v84, 8, v84
    v_mul_u32_u24 v{t3}, 3, v84
    v_sub_u32 v71, v71, v{t3}
    v_cmp_lt_u32 vcc, 26, v{t0}
    v_add_u32 v71, 6, v71
    v_add_u32 v84, 1, v84
    v_cndmask_b32 v{t1}, v{t1}, v71, vcc
    v_cndmask_b32 v{t2}, v{t2}, v84, vcc
    v_add_u32 v{t2}, s{S_J}, v{t2}
    v_and_b32 v{t2}, 3, v{t2}
    s_and_b32 s9, s{S_J}, 12
    v_add_u32 v{t2}, s9, v{t2}
    v_and_b32 v{t3}, 1, v{t2}
    v_add_u32 v{t1}, v{t1}, v{t3}
    v_subrev_u32 v{t3}, 9, v{t1}
    v_min_u32 v{t1}, v{t1}, v{t3}
    v_mul_u32_u24 v{t2}, 9, v{t2}
    v_add_u32 v{t1}, v{t1}, v{t2}
    v_mul_u32_u24 v{t1}, {32*1152}, v{t1}
    s_and_b32 s9, s{S_J}, 3
    s_mul_i32 s9, s9, 288
    v_add_u32 v{V_TAB}, s9, v{t1}
    """)
    e(f"""
    s_mov_b32 s{S_INV}, 0x3ae38e39
    s_mov_b32 s{S_LAY}, 0
    s_mov_b32 s{S_PRG}, 0
    s_mov_b32 s{S_C1}, {hex(C1)}
    v_mov_b32 v{V_C2}, {hex(C2)}
    s_lshl_b32 s8, s{S_G}, 8
    v_and_b32 v{t0}, 15, v0
    v_lshl_add_u32 v{V_FP}, v{t0}, 2, s8
    s_and_b32 s9, s{S_J}, 12
    s_lshl_b32 s9, s9, 2
    s_add_u32 s9, s9, s8
    v_and_b32 v{t1}, 3, v0
    v_lshl_add_u32 v{V_FQ}, v{t1}, 2, s9
    s_lshl_b32 s9, s{S_J}, 2
    s_add_u32 s8, s8, s9
    v_mov_b32 v{t1}, s8
    v_cmp_eq_u32 vcc, 0, v0
    v_lshrrev_b32 v{t2}, 4, v{L_}
    v_mul_u32_u24 v{V_PL}, 9216, v{t2}
    v_cndmask_b32 v{V_FS}, v{BG}, v{t1}, vcc
    v_lshl_add_u32 v{V_PL}, v{t0}, 4, v{V_PL}
    v_mul_u32_u24 v{V_ST8}, {4*9216}, v{B_}
    v_mul_u32_u24 v{t1}, 2304, v{D_}
    v_add_u32 v{V_ST8}, v{V_ST8}, v{t1}
    v_lshl_add_u32 v{V_ST8}, v{R_}, 4, v{V_ST8}
    v_lshl_add_u32 v{V_ST8}, v{t2}, 5, v{V_ST8}
    s_and_b32 s8, s{S_J}, 3
    s_mul_i32 s9, s8, 9
    s_add_u32 s9, s9, 1
    s_lshr_b32 s9, s9, 1
    s_lshl_b32 s9, s9, 7
    v_add_u32 v{V_ST}, s9, v{V_ST8}
    s_lshr_b32 s9, s8, 1
    s_mul_i32 s9, s9, {9*128}
    s_and_b32 s8, s8, 1
    s_lshl_b32 s8, s8, 3
    s_add_u32 s9, s9, s8
    s_add_u32 s9, s9, {4*128}
    v_add_u32 v{V_ST8}, s9, v{V_ST8}
    v_bfe_u32 v{t1}, v0, 1, 3
    v_lshlrev_b32 v{V_X4}, 8, v{t1}
    v_lshl_add_u32 v{V_X4}, v{R_}, 4, v{V_X4}
    v_cmp_gt_u32 vcc, 16, v{L_}
    v_lshl_add_u32 v{V_X0}, v{C_}, 12, v{V_X4}
    v_lshl_add_u32 v{V_X0}, v{A_}, 11, v{V_X0}
    v_cndmask_b32 v{V_X4}, v{BG}, v{V_X4}, vcc
    v_lshrrev_b32 v{t1}, 2, v{L_}
    v_and_b32 v{t2}, 3, v0
    v_lshlrev_b32 v{t2}, 3, v{t2}
    v_mul_u32_u24 v{TR2}, 288, v{t1}
    v_add_u32 v{TR2}, v{TR2}, v{t2}
    v_add_u32 v{TR2+1}, 55296, v{TR2}
    v_add_u32 v{TR2+2}, {2*55296}, v{TR2}
    v_lshl_add_u32 v{t1}, v{t1}, 7, v{t2}
    v_bfe_u32 v{t2}, v0, 3, 2
    """)
    for t in range(4):
        e(f"v_xor_b32 v{t3}, {t}, v{t2}\nv_lshl_add_u32 v{TR1+t}, v{t3}, 5, v{t1}\nv_add_u32 v{TR1+4+t}, 49152, v{TR1+t}\nv_add_u32 v{TR1+8+t}, {2*49152}, v{TR1+t}")
    e(f"""
    v_lshrrev_b32 v{t0}, 3, v0
    v_mul_u32_u24 v{t0}, {YPAD}, v{t0}
    v_and_b32 v{t1}, 7, v0
    v_lshl_add_u32 v{t0}, v{t1}, 4, v{t0}
    v_add_u32 v{t0}, {LDS_Y}, v{t0}
    v_lshlrev_b32 v{t1}, 1, v{A_}
    v_add_u32 v{t1}, v{t1}, v{B_}
    v_lshl_add_u32 v{t1}, v{t1}, 1, v{C_}
    v_lshrrev_b32 v{t2}, 1, v{D_}
    v_lshl_add_u32 v{t1}, v{t1}, 1, v{t2}
    v_mul_u32_u24 v{t1}, {YPAD}, v{t1}
    v_and_b32 v{t2}, 1, v{D_}
    v_lshl_add_u32 v{t1}, v{t2}, 6, v{t1}
    v_lshl_add_u32 v{t1}, v{R_}, 1, v{t1}
    s_lshl_b32 s8, s{S_WV}, 2
    s_add_u32 s8, s8, {LDS_Y}
    v_add_u32 v{V_YG}, s8, v{t1}
    s_mul_i32 s{S_PB}, s{S_JJ}, {4*9216}
    s_mul_i32 s8, s{S_WV}, 2304
    s_add_u32 s{S_PB}, s{S_PB}, s8
    s_lshl_b32 s8, s{S_G}, 2
    s_add_u32 s8, s8, s{S_WV}
    s_mul_i32 s{S_ST0}, s8, {16*9216}
    s_lshr_b32 s9, s{S_J}, 2
    s_mul_i32 s9, s9, 9216
    s_add_u32 s{S_ST0}, s{S_ST0}, s9
    s_add_u32 s{S_ST1}, s{S_ST0}, {8*9216}
    """)
    for d, sr_ in ((1, S_HA), (2, S_HB), (3, S_HC)):
        e(f"""
        s_add_u32 s8, s{S_J}, {d}
        s_and_b32 s8, s8, 3
        s_and_b32 s9, s{S_JJ}, 0xffc
        s_add_u32 s8, s8, s9
        s_lshl_b32 s8, s8, 2
        s_add_u32 s8, s8, s{S_WV}
        s_mul_i32 s{sr_}, s8, 18432
        """)
    def y_gather():
        for i in range(16, 20): e(f"v_mov_b32 v{Y+i}, 0")
        for p in range(5):
            if p == 4: e("s_mov_b64 exec, 0xffffffff")
            for i in range(4): e(f"ds_read_u16 v{Y+4*p+i}, v{V_YG} offset:{p*16*YPAD + i*16}")
        e("s_mov_b64 exec, -1")
    e(f"""
    s_waitcnt vmcnt({5 + 9*d0})
    ds_write_b128 v{t0}, {q4(YL)}
    ds_write_b128 v{t0}, {q4(YL+4)} offset:{32*YPAD}
    s_cmp_lg_u32 s{S_WV}, 0
    s_cbranch_scc1 L_main_y3
    ds_write_b128 v{t0}, {q4(YL+8)} offset:{64*YPAD}
    L_main_y3:
    s_waitcnt lgkmcnt(0)
    s_barrier
    """)
    y_gather()
    e(f"s_waitcnt vmcnt({9*d0})")
    for i in range(10):
        unpack_lo(e, X + 2*i, XP + i); unpack_hi(e, X + 2*i + 1, XP + i)
    rstamp(e, 1, prof)
    if not OPT['dl']:
        for s in range(d0, 2): dma_now(first3[s])
    e("L_main_gate:")
    e(f"""
    v_and_b32 v{MK}, 32, v0
    v_cmp_eq_u32 vcc, 0, v{MK}
    s_nop 1
    v_cndmask_b32 v{MK}, 0, 1.0, vcc
    """)
    layernorm(e, True)
    e("s_waitcnt lgkmcnt(0)")
    for i in range(20): unpack_lo(e, Y + i, Y + i)
    for i in range(10): e(pk("mul", Dd + 2*i, Dd + 2*i, Y + 2*i))
    round20(e, Dd, PK, Dd)
    for i in range(10): e(pk("add", X + 2*i, X + 2*i, Dd + 2*i))
    round20(e, X, XP, X)
    layernorm(e, False)
    e(f"""
    s_lshr_b32 s8, s{S_JJ}, 1
    s_mul_i32 s8, s8, 18432
    s_and_b32 s9, s{S_JJ}, 1
    s_lshl_b32 s9, s9, 7
    s_add_u32 s8, s8, s9
    s_lshl_b32 s9, s{S_WV}, 5
    s_add_u32 s8, s8, s9
    s_add_u32 s9, s8, 8192
    s_add_u32 s{S_T}, s8, 16384
    """)
    for pp in range(3):
        e(f"v_permlane16_swap_b32 v{PK+4*pp}, v{PK+4*pp+2}\nv_permlane16_swap_b32 v{PK+4*pp+1}, v{PK+4*pp+3}")
    e(f"""
    buffer_store_dwordx4 {q4(PK)}, v{V_X0}, s[{S_XN}:{S_XN+3}], s8 offen sc1
    buffer_store_dwordx4 {q4(PK+4)}, v{V_X0}, s[{S_XN}:{S_XN+3}], s9 offen sc1
    buffer_store_dwordx4 {q4(PK+8)}, v{V_X4}, s[{S_XN}:{S_XN+3}], s{S_T} offen sc1
    """)
    rstamp(e, 2, prof, 0); rstamp(e, 8, prof, 1)
    e(f"""
    s_lshl_b32 s8, s{S_G}, 2
    s_add_u32 s8, s8, s{S_WV}
    s_mul_i32 s9, s8, {2*18432}
    s_add_u32 s8, s9, 18432
    s_mov_b32 s{S_CNT}, 0
    s_add_u32 s{S_COL}, s{S_COL0}, 128
    s_add_u32 s{S_O3}, s{S_COL0}, 128
    s_add_u32 s{S_O2}, s{S_O3}, {288*9216}
    s_lshl_b32 s{S_HS}, s{S_JJ}, 2
    s_add_u32 s{S_HS}, s{S_HS}, s{S_WV}
    s_mul_i32 s{S_HS}, s{S_HS}, 18432
    s_sub_u32 s{S_HS}, s{S_HS}, 4096
    s_mov_b64 s[{S_A}:{S_A+1}], s[{S_WG}:{S_WG+1}]
    s_mov_b64 s[{S_A+2}:{S_A+3}], s[{S_WG+2}:{S_WG+3}]
    s_mov_b64 s[{S_MISC}:{S_MISC+1}], s[{S_WU}:{S_WU+1}]
    s_mov_b64 s[{S_MISC+2}:{S_MISC+3}], s[{S_WU+2}:{S_WU+3}]
    """)
    e("s_waitcnt vmcnt(0)\ns_barrier")
    for x in sig_ops(1): e(x)
    if OPT['dl'] and d0 < 2:
        e(f"s_cmp_lg_u32 s{S_LAY}, 0\ns_cbranch_scc1 L_main_nod")
        for s in range(d0, 2): dma_now(first3[s])
        e("L_main_nod:")
    for s in ((2,) if OPT['pad'] else (2, 3)): dma_now(first3[s])
    e(f"s_add_u32 s{S_NX}, s{S_PRG}, 1")
    spin(e, "xn", S_NX, V_FP)
    if OPT['dl'] and d0 == 0: e("s_barrier")
    rstamp(e, 3, prof, 0); rstamp(e, 9, prof, 1); fstamp(e, 1, prof)
    def x_loads(k):
        L = [f"buffer_load_dwordx4 {ar(8*k+4*mt)}, v{V_L16}, s[{S_XN}:{S_XN+3}], s{9-mt} offen offset:{(k%4)*1024} sc1" for mt in range(2)]
        if k % 4 == 3: L += ["s_add_u32 s9, s9, 4096", "s_add_u32 s8, s8, 4096"]
        return L
    xpre = OPT['xpre']
    for k in range(xpre):
        for x in x_loads(k): e(x)
    R1 = lambda slot: (lambda f, h: rd1(slot, f >> 2, f & 3, h))
    for f2 in range(OPT['la']):
        va, off = R1(0)(f2 >> 1, f2 & 1); d = FB + 2 * f2
        e(f"ds_read_b64_tr_b16 a[{d}:{d+1}], v{va} offset:{off}")
    def p1_mf(ph):
        acc = G if ph < 2 else U
        def f_(f, mt, A):
            u, t = f >> 2, f & 3
            k = 9 * (ph & 1) + u
            c = acc + 8 * t + 4 * mt
            d = T + 8 * t + 4 * mt if (ph == 1 and u == 8) else c
            return mfma(d, A, ar(8 * k + 4 * mt), None if k == 0 else c)
        return f_
    def vm_between(seq, a, b):
        return sum(1 for i, s in seq for (p, t) in s.vm if a < (i, p) < b)
    dm = [dma_list(S_WU, D1, f"s_add_u32 s{S_O}, s{S_COL}, {288*9216}", S_O, 3), dma_list(S_WG, D1, None, S_COL, 0),
          dma_list(S_A, D1, None, S_O2, 1), dma_list(S_MISC, D1, None, S_O3, 2)]
    pb0 = OPT['pbd']
    PK_ = [Stage(p1_mf(0), R1(0), R1(1), [(first3[3], [OPT['pad'] + (70 - OPT['pad']) * n // 8 for n in range(9)])] if OPT['pad'] else []), Stage(p1_mf(1), R1(1), R1(2), [(dm[1], [pb0 + (70 - pb0) * n // 8 for n in range(9)])])]
    xpos = {k: (-1, 2 * k + 1) for k in range(xpre)}
    for k in range(xpre, 18):
        w_ = 8 // OPT['xr']
        g = (k - xpre) * w_
        for n, x in enumerate(x_loads(k)):
            gg = g + (w_ // 2) * min(n, 1)
            PK_[gg // 72].put(gg % 72, x)
        xpos[k] = divmod(g + w_ // 2, 72)
    class Pre: vm = [(i, 'x') for i in range(2 * xpre)]
    pseq = [(-1, Pre)] + list(enumerate(PK_))
    for k in range(0, 18, OPT['xw2']):
        st, u = divmod(k, 9)
        kn = min(17, k + OPT['xw2'] - 1)
        PK_[st].pre.setdefault(8 * u, []).insert(0, f"s_waitcnt vmcnt({vm_between(pseq, xpos[kn], (st, 8*u - 0.5))})")
    for s in PK_: add(s.pre, s.bar, "s_barrier")
    if OPT['pad']: add(PK_[1].pre, 71, f"s_waitcnt vmcnt({vm_between(pseq, (0, 70), (1, 70.5))})")
    ST = [Stage(p1_mf(ph), R1(ph), R1((ph + 1) & 3), [(dm[ph], DP)]) for ph in range(4)]
    ST[0].put(56, f"s_add_u32 s{S_COL}, s{S_COL}, 128")
    sw1 = [f"s_and_b32 s8, s{S_J}, 1", f"s_mul_i32 s8, s8, {512+64}", f"s_add_u32 s{S_O2}, s{S_COL0}, 512", f"s_sub_u32 s{S_O2}, s{S_O2}, s8",
           f"s_mov_b32 s{S_COL}, s{S_O2}", f"s_mov_b64 s[{S_A}:{S_A+1}], s[{S_WU}:{S_WU+1}]"] + [f"v_add_u32 v{D1+n}, v{D1+n}, v{V_DH}" for n in range(9)]
    sw2 = [f"v_readlane_b32 s{S_O3}, v{V_TAB}, 0", f"s_mov_b64 s[{S_MISC}:{S_MISC+1}], s[{S_WD}:{S_WD+1}]"] + [f"v_mov_b32 v{D1+n}, v{D2+n}" for n in range(9)]
    ST[0].put(58, f"s_cmp_lg_u32 s{S_CNT}, 3\ns_cbranch_scc1 L_main_swb\n@SW1\nL_main_swb:")
    ST[2].put(58, f"s_cmp_lg_u32 s{S_CNT}, 3\ns_cbranch_scc1 L_main_swb2\n@SW2\nL_main_swb2:")
    ST[3].put(56, f"s_add_u32 s{S_O2}, s{S_O2}, 128"); ST[3].put(57, f"s_add_u32 s{S_O3}, s{S_O3}, 128")
    ST[3].put(63, f"s_add_u32 s{S_HS}, s{S_HS}, 4096")
    ST[3].put(70, f"s_add_u32 s{S_CNT}, s{S_CNT}, 1"); ST[3].put(71, f"s_cmp_lt_u32 s{S_CNT}, 4")
    for s in ST: add(s.pre, s.bar, "X\nX")
    na = OPT['ga'] // 4
    place(ST[:2], fin_block(STG), 2, 134)
    uo = []
    for q in range(na): uo += chain(quad(T, q), V_T + 4 * (q & 1))
    place(ST[2:], uo, 2, 144)
    for s in ST:
        for k in list(s.pre): s.pre[k] = [x for x in s.pre[k] if not x.startswith("X")]
        s.fl[58] = [x.replace("@SW1", "\n".join(sw1)).replace("@SW2", "\n".join(sw2)) for x in s.fl[58]]
    cyc = [(i, ST[i % 4]) for i in range(-4, 4)]
    for ph in range(4):
        lim = (ph - 2, DP[-1])
        if ph == 3: lim = max(lim, max((1, p) for p, t in ST[1].vm))
        ST[ph].barrier(vm_between(cyc, lim, (ph, ST[ph].bar - 1 + 0.5)))
    fstamp(e, 2, prof)
    for s in PK_: s.emit(e)
    e("s_branch L_main_p1m\n.p2align 6\nL_main_p1:")
    for c_ in range(1, 4): fstamp(e, 2 + c_, prof, c_)
    for i, s in enumerate(ST):
        if i == 2: e("L_main_p1m:")
        s.emit(e)
    e("s_cbranch_scc1 L_main_p1")
    fstamp(e, 6, prof)
    def ph_mf(acc):
        def f_(f, mt, A):
            u, t = f >> 2, f & 3
            k = u + 9 * (t >> 1)
            c = acc + 8 * (t & 1) + 4 * mt
            d = T + 8 * (t & 1) + 4 * mt if (acc == G and u == 8 and t >= 2) else c
            return mfma(d, A, ar(8 * k + 4 * mt), None if (u == 0 and t < 2) else c)
        return f_
    slot2 = lambda sg: (sg + 2) & 3
    wd = lambda sg: dma_list(S_WD, D2, f"v_readlane_b32 s{S_O}, v{V_TAB}, {sg}", S_O, slot2(sg))
    def fmap(sg):
        return (lambda f: (f & 3, f >> 2)) if sg == 8 else (lambda f: (f // 9, f % 9))
    R2 = lambda sg: (lambda f, h: rd2(slot2(sg), *fmap(sg)(f), h))
    def p2_mf(sg):
        def f_(f, mt, A):
            kl, tau = fmap(sg)(f)
            d, k = ENT[4 * sg + kl]
            c = ACC2[2 * tau + mt]
            return mfma(c, A, h_reg(d, k, mt), None if (sg == 0 and kl == 0) else c)
        return f_
    DPW = [7, 12, 17, 22, 27, 32, 38, 44, 50]
    nxt = [dma_list(S_WG, D1, None, S_COL, 0), dma_list(S_WG, D1, f"s_add_u32 s{S_O}, s{S_COL}, {288*9216}", S_O, 1)]
    HG = Stage(ph_mf(G), R1(0), R1(1), [(wd(1), DPW)])
    HU = Stage(ph_mf(U), R1(1), R2(0), [(wd(2), DPW)])
    P2 = []
    for sg in range(9):
        if sg < 6: dms = [(wd(sg + 3), DPW)]
        elif sg == 6: dms = []
        else: dms = [(nxt[sg - 7], DPW)]
        P2.append(Stage(p2_mf(sg), R2(sg), R2(sg + 1) if sg < 8 else None, dms, last=(sg == 8)))
    A_ = [HG, HU] + P2
    for s in A_: add(s.pre, s.bar, "X\nX")
    slow = []
    needs = []
    def gput(g, x): A_[g // 72].put(g % 72, x)
    def check(g, k, tag):
        gput(g - 1, f"s_add_u32 s{S_NX}, s{S_PRG}, {k}")
        gput(g, f"v_cmp_gt_u32 vcc, s{S_NX}, v{V_FV}")
        gput(g + 1, f"s_cbranch_vccnz L_slow{tag}\nL_back{tag}:")
        slow.append(tag)
    def use_pos(n):
        sg, kl = divmod(n, 4)
        return 144 + 72 * sg + (2 * kl if sg == 8 else 18 * kl)
    def spread_loads(items, lo, hi):
        nl = sum(1 for n, x in items if n is not None); c = 0
        for n, x in items:
            g = lo + (hi - lo) * c // max(1, nl - 1)
            if n is None: gput(g - 1, x)
            else:
                gput(g, x); needs.append((use_pos(n), g)); c += 1
    def tagged(d, ks, loads):
        L = []; it = iter([ENT.index((d, k)) for k in ks for mt in range(2)])
        for x in loads: L.append((next(it) if x.startswith("buffer") else None, x))
        return L
    for n, x in enumerate(sig_ops(5)): HG.put(n, x)
    for n in range(9): P2[6].put(4 + 5 * n, f"v_add_u32 v{D1+n}, {n*8*9216 - (n%4)*1024}, v{V_D1S}" if n else f"v_mov_b32 v{D1}, v{V_D1S}")
    P2[6].put(60, f"s_cmp_lg_u32 s{S_LAY}, 0"); P2[6].put(60, f"s_cselect_b32 s{S_COL}, {BIG}, s{S_COL0}")
    wpts = set()
    he0, hl0 = 144 + OPT['he0'], 144 + OPT['hl0']
    gput(72 + OPT['fe'], FLAG_Q); check(he0 - 4, 5, "e"); needs.append((he0 - 5, 72 + OPT['fe'])); wpts.add(he0 - 5)
    gput(144 + OPT['fl'], FLAG_Q); check(hl0 - 4, 6, "l"); needs.append((hl0 - 5, 144 + OPT['fl'])); wpts.add(hl0 - 5)
    own = h_loads(0, range(6), S_HS)
    own = [(f"s_sub_u32 s{S_HO}, s{S_HS}, {12288 - int(x.split(',')[-1])}" if x.startswith("s_add") else x) for x in own]
    spread_loads(tagged(0, range(6), own), max(4, OPT['ow0']), OPT['ow1'])
    if not OPT['nohx']:
        spread_loads(sum((tagged(d, range(6), h_loads(d, range(6), sr_)) for d, sr_ in ((1, S_HA), (2, S_HB), (3, S_HC))), []), he0, 144 + OPT['he1'])
        spread_loads(sum((tagged(d, (6, 7, 8), h_loads(d, (6, 7, 8), sr_)) for d, sr_ in ((1, S_HA), (2, S_HB), (3, S_HC))), []), hl0, 144 + OPT['hl1'])
    for n, x in enumerate(sig_ops(6)): P2[OPT['sg6']].put(55 + n, x)
    c0, c1 = OPT['c0'], OPT['c1']
    place(A_, fin_block(STG), 4, min(142, c0))
    o2 = []
    for q in range(4): o2 += chain(quad(T, q), V_T + 4 * (q & 1))
    tr_ops = [f"s_add_u32 s{S_HS}, s{S_HS}, 4096"] + fin_block(HB + 64, 4)
    pos = place(A_, o2 + tr_ops, c0, c1)
    assert c0 >= 75 and pos[len(o2)] >= 147 and pos[len(o2)] > OPT['ow1'] and c1 <= 286
    late_st = pos[-1]
    for p in range(3):
        n = 16 * p + 19
        for x in out_pair(p):
            P2[8].put(n, x)
            if not x.startswith("buffer"): n += 1
    for s in A_:
        for k in list(s.pre): s.pre[k] = [x for x in s.pre[k] if not x.startswith("X")]
    seq = [(-2, ST[2]), (-1, ST[3])] + list(enumerate(A_))
    def lastvm(i, pred=lambda p, t: True): return max((i, p) for p, t in dict(seq)[i].vm if pred(p, t))
    isdma = lambda p, t: t == 'dma'
    bars = [72 * i + s.bar for i, s in enumerate(A_) if i < 10]
    if OPT['wp']: wpts |= {72 * i + 18 for i in range(2, 10)} | {720}
    pts = sorted(wpts | set(bars))
    done = (-9, 0)
    for n, w in enumerate(pts):
        nx = pts[n + 1] if n + 1 < len(pts) else 10**6
        i = w // 72
        lim = [divmod(g, 72) for u, g in needs if w <= u < nx]
        assert all(g < w for u, g in needs if w <= u < nx), (w, nx)
        if w in bars:
            lim.append(lastvm(i - 2, isdma))
            if i == 2 + OPT['sg6']: lim.append(divmod(late_st, 72))
        if not lim: continue
        lim = max(lim)
        cnt = vm_between(seq, lim, (i, w % 72 - 0.5))
        if w in bars: A_[i].barrier(cnt)
        elif lim > done: A_[i].pre.setdefault(w % 72, []).insert(0, f"s_waitcnt vmcnt({cnt})")
        done = max(done, lim)
    assert min(u for u, g in needs) >= pts[0]
    for i, s in enumerate(A_):
        s.emit(e)
        if i == 1: rstamp(e, 4, prof, OPT['sl'])
        if i in (1, 4, 7, 10): fstamp(e, {1: 7, 4: 8, 7: 9, 10: 10}[i], prof)
    for x in out_pair(3): e(x)
    for x in out_single(): e(x)
    rstamp(e, 5, prof, OPT['sl'])
    e("""
    v_bfe_u32 v144, v0, 1, 3
    v_and_b32 v145, 1, v0
    v_lshlrev_b32 v145, 4, v145
    s_mov_b32 s8, 0x3f80
    v_lshlrev_b32 v145, v145, s8
    """)
    for i in range(8):
        e(f"v_cmp_eq_u32 vcc, {i}, v144\ns_nop 1\nv_cndmask_b32 v{SEL+i}, 0, v145, vcc")
    for i in range(10):
        unpack_lo(e, X + 2*i, XP + i); unpack_hi(e, X + 2*i + 1, XP + i)
    e("s_waitcnt vmcnt(0)\ns_barrier")
    for x in sig_ops(7): e(x)
    rstamp(e, 6, prof, OPT['sl'])
    y_gather()
    spin(e, "fin", S_T, V_FP)
    for sg in range(9):
        e(f"buffer_load_dwordx4 {ar(4*sg)}, v{V_PL}, s[{S_P}:{S_P+3}], s{S_PB} offen offset:{sg*256} sc1")
    for sg in range(9):
        d = DT + 4 * (sg >> 1)
        e(f"s_waitcnt vmcnt({8 - sg})")
        e(mfma(d, q4(SEL + 4 * (sg & 1)), ar(4 * sg), d if sg & 1 else None))
    e("s_nop 7")
    round20(e, DT, PK, Dd)
    for i in range(10): e(pk("add", X + 2*i, X + 2*i, Dd + 2*i))
    e(f"s_cmp_lg_u32 s{S_LAY}, 0\ns_cbranch_scc1 L_main_fin")
    round20(e, X, XP, X)
    rstamp(e, 7, prof)
    e(f"""
    s_mov_b32 s{S_LAY}, 1
    s_mov_b32 s{S_PRG}, 16
    s_add_u32 s{S_XN}, s{S_XN}, {WS_XN[1] - WS_XN[0]}
    s_addc_u32 s{S_XN+1}, s{S_XN+1}, 0
    s_add_u32 s{S_P}, s{S_P}, {WS_P3[1] - WS_P3[0]}
    s_addc_u32 s{S_P+1}, s{S_P+1}, 0
    s_add_u32 s{S_HX}, s{S_HX}, {WS_HX[1] - WS_HX[0]}
    s_addc_u32 s{S_HX+1}, s{S_HX+1}, 0
    s_branch L_main_gate
    """)
    for tag in slow:
        e(f"L_slow{tag}:")
        spin(e, f"s{tag}", S_NX, V_FQ)
        e(f"s_branch L_back{tag}")
    e("L_main_fin:")
    round20(e, X, XP, None)
    srd(e, S_MISC, S_OUT, 0, ACT)
    for p in range(5): e(f"buffer_store_dwordx2 {pr(XP+2*p)}, v{V_A if p < 4 else V_A4}, s[{S_MISC}:{S_MISC+3}], s{S_RP} offen offset:{256*p}")
    if prof:
        e("s_waitcnt vmcnt(0)")
        rstamp(e, 10, prof)
        e("s_waitcnt lgkmcnt(0)")
        srd(e, S_MISC, 10, WS_DBG + 3 * 65536, 1024 * 128)
        e(f"s_lshl_b32 s8, s2, 2\ns_add_u32 s8, s8, s{S_WV}\ns_lshl_b32 s8, s8, 7\nv_mov_b32 v1, s8")
        for i in range(11):
            e(f"v_mov_b32 v2, 0\nv_mov_b32 v3, s{76+2*i}\nbuffer_store_dwordx2 v[2:3], v1, s[{S_MISC}:{S_MISC+3}], 0 offen offset:{8*i}\ns_nop 1")
    e("L_main_end:\ns_endpgm")
    return dict(name=name, grid=256, block=256, lds=LDS_TOTAL, desc=kernel_desc(name, NV, NA, sgpr=102))
```
